```python
import torch

def _softmax(x, axis=-1):
    return torch.softmax(x, dim=axis)
def _gelu(x):
    return torch.nn.functional.gelu(x, approximate="tanh")
def _silu(x):
    return torch.nn.functional.silu(x)
def _sigmoid(x):
    return torch.sigmoid(x)
def _layernorm(x, axis=-1, eps=1e-5):
    m = x.mean(dim=axis, keepdim=True)
    v = x.var(dim=axis, keepdim=True, unbiased=False)
    return (x - m) / torch.sqrt(v + eps)
def _scatter_add(tgt, idx, src, axis=0):
    return tgt.clone().index_add_(axis, idx, src)
def _segment_sum(src, seg, n):
    out = torch.zeros((n,) + src.shape[1:], dtype=src.dtype)
    return out.index_add_(0, seg, src)
def _pad(x, pw):
    flat = tuple(v for pair in reversed(pw) for v in pair)
    return torch.nn.functional.pad(x, flat)

kernel_name = 'concat_heads__mha_block_cached__compressed_kv_cla__decode'

def setup_inputs():

    _w = (lambda a: (lambda t: t.to(torch.bfloat16) if t.is_floating_point() else t)(torch.as_tensor(a)))
    def _A_setup():
        B, Sq, D = 2, 1, 448
        H, Sk, Dh = 16, 4096, 256
        return {
            "x": _w((lambda *s: torch.randn(*s, dtype=torch.bfloat16) * 1.6)(B, Sq, D)),
            "k_cache": _w((lambda *s: torch.randn(*s, dtype=torch.bfloat16) * 1.6)(B, H, Sk, Dh)),
            "v_cache": _w((lambda *s: torch.randn(*s, dtype=torch.bfloat16) * 0.05)(B, H, Sk, Dh)),
            "wq": _w((lambda *s: torch.randn(*s, dtype=torch.bfloat16) * 1.6)(D, H * Dh) * (D ** -0.5)),
            "wo": _w((lambda *s: torch.randn(*s, dtype=torch.bfloat16) * 0.05)(H * Dh, D) * ((H * Dh) ** -0.5)),
        }
    _A_in = _A_setup()

    def _B_setup():
        B, H, Sq, Sk, D, M = 2, 16, 1, 4096, 256, 448
        Dc = 4 * D
        return {
            "x": _w((lambda *s: torch.randn(*s, dtype=torch.bfloat16) * 3.2)(B, Sq, M)),
            "c_kv": _w((lambda *s: torch.randn(*s, dtype=torch.bfloat16) * 0.1)(B, Sk, Dc)),
            "w_q": _w((lambda *s: torch.randn(*s, dtype=torch.bfloat16) * 6.4)(M, H, D) * (M ** -0.5)),
            "w_uk": _w((lambda *s: torch.randn(*s, dtype=torch.bfloat16) * 6.4)(Dc, H, D) * (Dc ** -0.5)),
            "w_uv": _w((lambda *s: torch.randn(*s, dtype=torch.bfloat16) * 0.1)(Dc, H, D) * (Dc ** -0.5)),
            "w_o": _w((lambda *s: torch.randn(*s, dtype=torch.bfloat16) * 0.1)(H, D, M) * ((H * D) ** -0.5)),
        }
    _B_in = _B_setup()

    return {
        "A_x": _A_in["x"],
        "A_k_cache": _A_in["k_cache"],
        "A_v_cache": _A_in["v_cache"],
        "A_wq": _A_in["wq"],
        "A_wo": _A_in["wo"],
        "B_x": _B_in["x"],
        "B_c_kv": _B_in["c_kv"],
        "B_w_q": _B_in["w_q"],
        "B_w_uk": _B_in["w_uk"],
        "B_w_uv": _B_in["w_uv"],
        "B_w_o": _B_in["w_o"],
    }

def reference(A_x, A_k_cache, A_v_cache, A_wq, A_wo, B_x, B_c_kv, B_w_q, B_w_uk, B_w_uv, B_w_o):
    def _A_ref(x, k_cache, v_cache, wq, wo):
        B, Sq, D = x.shape
        H, Dh = 16, 256
        q = (lambda x, *d: x.permute(*d))((x @ wq).reshape(B, Sq, H, Dh), 0, 2, 1, 3)
        scores = torch.einsum("bhqd,bhkd->bhqk", q, k_cache) * (Dh ** -0.5)
        p = _softmax(scores, axis=-1)
        o = torch.einsum("bhqk,bhkd->bhqd", p, v_cache)
        return (lambda x, *d: x.permute(*d))(o, 0, 2, 1, 3).reshape(B, Sq, H * Dh) @ wo

    def _B_ref(x, c_kv, w_q, w_uk, w_uv, w_o):
        B, Sq, M = x.shape[0], x.shape[1], x.shape[2]
        Sk = c_kv.shape[1]
        H, D = w_q.shape[1], w_q.shape[2]
        q = torch.einsum("bqm,mhd->bhqd", x, w_q)
        k = torch.einsum("bkc,chd->bhkd", c_kv, w_uk)
        v = torch.einsum("bkc,chd->bhkd", c_kv, w_uv)
        scores = torch.einsum("bhqd,bhkd->bhqk", q, k) * (D ** -0.5)
        off = Sk - Sq
        qi = torch.arange(Sq)[:, None]
        kj = torch.arange(Sk)[None, :]
        cmask = kj <= (qi + off)
        scores = torch.where(cmask[None, None], scores, -1e9)
        p = _softmax(scores, axis=-1)
        ctx = torch.einsum("bhqk,bhkd->bhqd", p, v)
        return torch.einsum("bhqd,hdm->bqm", ctx, w_o)

    a = _A_ref(A_x, A_k_cache, A_v_cache, A_wq, A_wo)
    b = _B_ref(B_x, B_c_kv, B_w_q, B_w_uk, B_w_uv, B_w_o)
    return torch.concatenate([a, b], axis=-1)
```

```python
def emit(g):
    a, vr, srd = g.a, g.vr, g.srd

    def poll(off, target, tag):
        a("s_cmp_lg_u32 s3, 0")
        a(f"s_cbranch_scc1 L_pw_{tag}")
        a(f"v_mov_b32 v9, {off}")
        a("s_mov_b32 s11, 0")
        a(f"L_pl_{tag}:")
        a("buffer_load_dword v8, v9, s[60:63], 0 offen sc1")
        a("s_waitcnt vmcnt(0)")
        a("v_readfirstlane_b32 s10, v8")
        a(f"s_cmp_ge_u32 s10, {target}")
        a(f"s_cbranch_scc1 L_pw_{tag}")
        a("s_sleep 4")
        a("s_add_u32 s11, s11, 1")
        a("s_cmp_lt_u32 s11, 0x40000")
        a(f"s_cbranch_scc1 L_pl_{tag}")
        a(f"L_pw_{tag}:")
        a("s_barrier")

    def signal(off, tag):
        a("s_waitcnt vmcnt(0)")
        a("s_barrier")
        a("s_cmp_lg_u32 s3, 0")
        a(f"s_cbranch_scc1 L_sg_{tag}")
        a("v_mov_b32 v8, 1")
        a(f"v_mov_b32 v9, {off}")
        a("s_mov_b64 exec, 1")
        a("buffer_atomic_add v8, v9, s[60:63], 0 offen")
        a("s_mov_b64 exec, -1")
        a(f"L_sg_{tag}:")

    LB_Q = 32768
    LB_QA = 33792
    WUK = 32
    QOP = 16
    DD = 96
    SS = 112
    a("L_B1:")
    g.load_kernargs()
    a("s_lshr_b32 s4, s9, 2")
    a("s_lshl_b32 s4, s4, 3")
    a("s_add_u32 s4, s4, s8")
    a("s_and_b32 s14, s9, 3")
    a("s_mul_i32 s11, s3, 112")
    a("s_waitcnt lgkmcnt(0)")
    a(f"s_add_u32 s92, s{g.P_BX}, s11")
    a(f"s_addc_u32 s93, s{g.P_BX+1}, 0")
    a("s_add_u32 s94, s92, 896")
    a("s_addc_u32 s95, s93, 0")
    srd(44, g.P_BWQ, g.P_BWQ+1, 448*8192)
    srd(48, g.P_WUK, g.P_WUK+1, 1024*8192)
    srd(56, g.P_WS, g.P_WS+1, g.WS_SIZE)
    srd(60, g.P_DBG, g.P_DBG+1, 256)
    a("s_load_dwordx16 s[64:79], s[92:93], 0")
    a("s_load_dwordx8 s[80:87], s[92:93], 64")
    a("s_load_dwordx4 s[88:91], s[92:93], 96")
    a("s_load_dwordx16 s[16:31], s[94:95], 0")
    a("s_load_dwordx8 s[32:39], s[94:95], 64")
    a("s_load_dwordx4 s[40:43], s[94:95], 96")
    g.stamp(0)
    g.qproj_issue()
    a("v_and_b32 v8, 7, v2")
    a("v_lshlrev_b32 v5, 13, v8")
    a("v_lshrrev_b32 v8, 3, v2")
    a("v_lshl_add_u32 v5, v8, 6, v5")
    a("v_lshl_add_u32 v5, v3, 4, v5")
    a("s_lshl_b32 s10, s14, 8")
    a("s_lshl_b32 s11, s3, 5")
    a("s_add_u32 s10, s10, s11")
    a("s_lshl_b32 s10, s10, 13")
    a("s_lshl_b32 s11, s4, 9")
    a("s_add_u32 s10, s10, s11")
    for u in range(4):
        for j in range(4):
            a(f"buffer_load_dwordx4 {vr(WUK+(u*4+j)*4)}, v5, s[48:51], s10 offen offset:{j*128} nt")
        if u < 3:
            a("s_add_u32 s10, s10, 0x10000")
    a("s_waitcnt lgkmcnt(0)")
    g.qproj_compute([64, 16], 240, 16)
    g.qproj_reduce(2, 240, 0, LB_Q)
    g.stamp(1)
    a("v_bfe_u32 v8, v2, 1, 1")
    a("v_lshlrev_b32 v8, 9, v8")
    a("v_and_b32 v9, 1, v2")
    a("v_lshl_add_u32 v8, v9, 6, v8")
    a("v_lshl_add_u32 v8, v3, 4, v8")
    for j in range(4):
        a(f"ds_read_b128 {vr(QOP+4*j)}, v8 offset:{LB_Q + j*128}")
    a("s_waitcnt vmcnt(0) lgkmcnt(0)")
    for j in range(4):
        for u in range(4):
            c = "0" if j == 0 else vr(DD+4*u)
            a(f"v_mfma_f32_16x16x32_bf16 {vr(DD+4*u)}, {vr(WUK+(u*4+j)*4)}, {vr(QOP+4*j)}, {c}")
    a("s_nop 7")
    a("s_nop 1")
    for p in range(2):
        for i in range(4):
            a(f"v_permlane32_swap_b32 v{DD+8*p+i}, v{DD+8*p+4+i}")
    a("s_nop 0")
    for p in range(2):
        for i in range(4):
            a(f"v_add_f32_dpp v{SS+4*p+i}, v{DD+8*p+4+i}, v{DD+8*p+i} quad_perm:[1,0,3,2] row_mask:0xf bank_mask:0xf")
    for p in range(2):
        a(f"v_cvt_pk_bf16_f32 v{32+2*p}, v{SS+4*p}, v{SS+4*p+1}")
        a(f"v_cvt_pk_bf16_f32 v{33+2*p}, v{SS+4*p+2}, v{SS+4*p+3}")
        for i in range(4):
            if i % 2 == 0:
                a(f"v_lshlrev_b32 v8, 16, v{32+2*p+i//2}")
            else:
                a(f"v_and_b32 v8, 0xffff0000, v{32+2*p+i//2}")
            a(f"v_sub_f32 v{SS+4*p+i}, v{SS+4*p+i}, v8")
        a(f"v_cvt_pk_bf16_f32 v{36+2*p}, v{SS+4*p}, v{SS+4*p+1}")
        a(f"v_cvt_pk_bf16_f32 v{37+2*p}, v{SS+4*p+2}, v{SS+4*p+3}")
    a("v_bfe_u32 v8, v2, 1, 1")
    a("v_lshlrev_b32 v8, 10, v8")
    a("v_lshl_add_u32 v8, v3, 3, v8")
    a("s_lshl_b32 s10, s3, 6")
    a("v_add_u32 v8, s10, v8")
    a("s_mov_b32 exec_lo, 0x00050005")
    a("s_mov_b32 exec_hi, 0x00050005")
    for p in range(2):
        for hl in range(2):
            a(f"ds_write_b64 v8, {vr(32+4*hl+2*p,2)} offset:{LB_QA + hl*512 + p*32}")
    a("s_mov_b64 exec, -1")
    a("s_waitcnt lgkmcnt(0)")
    a("s_barrier")
    a("s_cmp_lg_u32 s3, 0")
    a("s_cbranch_scc1 L_B1_done")
    a("v_lshlrev_b32 v8, 4, v1")
    a(f"ds_read_b128 {vr(32)}, v8 offset:{LB_QA}")
    a(f"ds_read_b128 {vr(36)}, v8 offset:{LB_QA+1024}")
    a("v_lshrrev_b32 v8, 5, v1")
    a("v_lshlrev_b32 v8, 15, v8")
    a("v_and_b32 v9, 31, v1")
    a("v_lshl_add_u32 v8, v9, 4, v8")
    a("s_lshl_b32 s10, s4, 11")
    a("s_lshl_b32 s11, s14, 9")
    a("s_add_u32 s10, s10, s11")
    a(f"s_add_u32 s10, s10, {g.QABS}")
    a("s_add_u32 s11, s10, 0x10000")
    a("s_waitcnt lgkmcnt(0)")
    a(f"buffer_store_dwordx4 {vr(32)}, v8, s[56:59], s10 offen sc1")
    a(f"buffer_store_dwordx4 {vr(36)}, v8, s[56:59], s11 offen sc1")
    a("s_waitcnt vmcnt(0)")
    a("v_mov_b32 v8, 1")
    a("v_mov_b32 v9, 0")
    a("s_mov_b64 exec, 1")
    a("buffer_atomic_add v8, v9, s[60:63], 0 offen")
    a("s_mov_b64 exec, -1")
    g.stamp(2)
    a("L_B1_done:")
    a("s_lshr_b32 s5, s14, 1")
    a("s_and_b32 s6, s14, 1")
    a("s_lshl_b32 s7, s6, 5")
    a("s_add_u32 s7, s7, 192")
    a("s_lshl_b32 s10, s3, 2")
    a("s_add_u32 s7, s7, s10")
    a("s_add_u32 s6, s6, 4")
    a("s_mov_b32 s14, 4")
    a("s_branch L_A_head")

    LB_SC = 131072
    LB_CL = 139264
    CK = 128
    QO = 32
    DQ = 64
    SC = 80
    PP = 112
    ID = 16
    a("L_B2:")
    g.load_kernargs()
    a("s_sub_u32 s9, s9, 8")
    a("s_lshl_b32 s9, s9, 3")
    a("s_add_u32 s9, s9, s8")
    a("s_lshr_b32 s5, s9, 5")
    a("s_and_b32 s6, s9, 31")
    a("s_lshr_b32 s4, s9, 2")
    a("s_and_b32 s14, s9, 3")
    a(f"s_mov_b32 s15, {g.C1:#x}")
    a("s_waitcnt lgkmcnt(0)")
    srd(44, g.P_CKV, g.P_CKV+1, 1 << 24)
    srd(48, g.P_WUV, g.P_WUV+1, 1024*8192)
    srd(56, g.P_WS, g.P_WS+1, g.WS_SIZE)
    srd(60, g.P_DBG, g.P_DBG+1, 256)
    g.stamp(0)
    a("v_and_b32 v8, 7, v2")
    a("v_lshlrev_b32 v5, 11, v8")
    a("v_lshrrev_b32 v8, 3, v2")
    a("v_lshl_add_u32 v5, v8, 6, v5")
    a("v_lshl_add_u32 v5, v3, 4, v5")
    a("s_lshl_b32 s10, s9, 18")
    a("s_lshl_b32 s11, s3, 8")
    a("s_add_u32 s10, s10, s11")
    for u in range(16):
        for j in range(2):
            a(f"buffer_load_dwordx4 {vr(CK+(u*2+j)*4)}, v5, s[44:47], s10 offen offset:{j*128} nt")
        if u < 15:
            a("s_add_u32 s10, s10, 0x4000")
    a("v_lshrrev_b32 v7, 5, v1")
    a("v_lshlrev_b32 v4, 13, v7")
    a("v_and_b32 v8, 31, v1")
    a("v_lshl_add_u32 v4, v8, 4, v4")
    a("s_lshl_b32 s10, s14, 8")
    a("s_lshl_b32 s11, s3, 5")
    a("s_add_u32 s10, s10, s11")
    a("s_lshl_b32 s10, s10, 13")
    a("s_lshl_b32 s11, s4, 9")
    a("s_add_u32 s10, s10, s11")
    a("s_lshl_b32 s11, s3, 14")
    for i in range(16):
        a("s_mov_b32 m0, s11")
        a("s_nop 0")
        a("buffer_load_dwordx4 v4, s[48:51], s10 offen nt lds")
        if i < 15:
            a("s_add_u32 s10, s10, 0x4000")
            a("s_add_u32 s11, s11, 0x400")
    for i in range(4):
        a(f"v_mov_b32 v{32+i}, 0")
    a("v_lshlrev_b32 v8, 4, v0")
    a(f"v_add_u32 v8, {LB_SC}, v8")
    a(f"ds_write_b128 v8, {vr(32)}")
    a("v_lshrrev_b32 v8, 3, v2")
    a("v_sub_u32 v8, v3, v8")
    a("v_lshlrev_b32 v8, 2, v8")
    a("v_bfe_u32 v9, v2, 1, 2")
    a("v_add_u32 v8, v8, v9")
    a("v_and_b32 v9, 1, v2")
    a("v_lshlrev_b32 v9, 4, v9")
    a("v_mov_b32 v10, 0x3f80")
    a("v_lshlrev_b32 v9, v9, v10")
    for sel in range(2):
        for w4 in range(4):
            a(f"v_cmp_eq_u32 vcc, {sel*8+w4}, v8")
            a("s_nop 1")
            a(f"v_cndmask_b32 v{ID+4*sel+w4}, 0, v9, vcc")
    a("s_waitcnt lgkmcnt(0)")
    poll(0, 64, "q")
    g.stamp(1)
    a("v_lshrrev_b32 v8, 1, v2")
    a("v_lshlrev_b32 v6, 11, v8")
    a("v_and_b32 v8, 1, v2")
    a("v_lshl_add_u32 v6, v8, 6, v6")
    a("v_lshl_add_u32 v6, v3, 4, v6")
    a("s_lshl_b32 s10, s5, 16")
    a("s_lshl_b32 s11, s3, 8")
    a("s_add_u32 s10, s10, s11")
    a(f"s_add_u32 s10, s10, {g.QABS}")
    for G in range(2):
        for hl in range(2):
            a(f"s_add_u32 s11, s10, {hl*32768 + G*16384}")
            for j2 in range(2):
                a(f"buffer_load_dwordx4 {vr(QO+((j2*2+G)*2+hl)*4)}, v6, s[56:59], s11 offen offset:{j2*128} sc1")
    a("v_and_b32 v8, 1, v1")
    a("v_cmp_eq_u32 s[96:97], 1, v8")
    a("v_lshlrev_b32 v11, 4, v1")
    a(f"v_add_u32 v11, {LB_SC}, v11")
    a("s_waitcnt vmcnt(0)")
    g.stamp(2)
    for T in range(8):
        for j2 in range(2):
            for hl in range(2):
                for G in range(2):
                    for uu in range(2):
                        d = DQ + (G*2+uu)*4
                        c = "0" if (j2 == 0 and hl == 0) else vr(d)
                        a(f"v_mfma_f32_16x16x32_bf16 {vr(d)}, {vr(CK+((2*T+uu)*2+j2)*4)}, {vr(QO+((j2*2+G)*2+hl)*4)}, {c}")
        a("s_nop 7")
        a("s_nop 1")
        for G in range(2):
            for i in range(4):
                a(f"v_permlane32_swap_b32 v{DQ+G*8+i}, v{DQ+G*8+4+i}")
        a("s_nop 0")
        for i in range(4):
            a(f"v_add_f32_dpp v{DQ+i}, v{DQ+4+i}, v{DQ+i} quad_perm:[1,0,3,2] row_mask:0xf bank_mask:0xf")
            a(f"v_add_f32_dpp v{DQ+12+i}, v{DQ+8+i}, v{DQ+12+i} quad_perm:[1,0,3,2] row_mask:0xf bank_mask:0xf")
        for i in range(4):
            a(f"v_cndmask_b32 v{SC+4*T+i}, v{DQ+i}, v{DQ+12+i}, s[96:97]")
        for i in range(4):
            a(f"ds_add_f32 v11, v{SC+4*T+i} offset:{T*1024+i*4}")
    a("s_waitcnt lgkmcnt(0)")
    a("s_barrier")
    for T in range(8):
        a(f"ds_read_b128 {vr(SC+4*T)}, v11 offset:{T*1024}")
    a("s_waitcnt lgkmcnt(0)")
    a(f"v_max_f32 v12, v{SC}, v{SC+1}")
    for k in range(2, 32, 2):
        a(f"v_max3_f32 v12, v12, v{SC+k}, v{SC+k+1}")
    g.cross_g("v_max_f32", 12, 8)
    a("v_mul_f32 v9, s15, v12")
    for k in range(32):
        a(f"v_fma_f32 v{SC+k}, v{SC+k}, s15, -v9")
    for k in range(32):
        a(f"v_exp_f32 v{SC+k}, v{SC+k}")
    a("s_nop 0")
    a(f"v_add_f32 v13, v{SC}, v{SC+1}")
    for k in range(2, 32):
        a(f"v_add_f32 v13, v13, v{SC+k}")
    for k in range(0, 32, 2):
        a(f"v_cvt_pk_bf16_f32 v{PP+k//2}, v{SC+k}, v{SC+k+1}")
    g.cross_g("v_add_f32", 13, 8)
    a("v_lshrrev_b32 v14, 1, v2")
    a("v_and_b32 v8, 1, v2")
    a("v_lshl_add_u32 v14, v8, 3, v14")
    a("s_cmp_lg_u32 s3, 0")
    a("s_cbranch_scc1 L_B2_nostat")
    a("v_lshlrev_b32 v8, 3, v14")
    a("s_lshl_b32 s10, s9, 7")
    a(f"s_add_u32 s10, s10, {g.B_STAT}")
    a("s_mov_b64 exec, 0xffff")
    a("buffer_store_dwordx2 v[12:13], v8, s[56:59], s10 offen sc1")
    a("s_mov_b64 exec, -1")
    a("L_B2_nostat:")
    AC = 32
    DT = [64, 72, 80, 88]
    XY = [96, 100, 104, 108]
    groups = [(T, j2, sel) for T in range(8) for j2 in range(2) for sel in range(2)]
    NG = len(groups)
    def st1(n):
        T, j2, sel = groups[n]
        d = DT[n % 4]
        for uu in range(2):
            a(f"v_mfma_f32_16x16x32_bf16 {vr(d+4*uu)}, {vr(CK+((2*T+uu)*2+j2)*4)}, {vr(ID+4*sel)}, 0")
    def st2(n):
        d = DT[n % 4]; x = XY[n % 4]
        a(f"v_cvt_pk_bf16_f32 v{x}, v{d}, v{d+1}")
        a(f"v_cvt_pk_bf16_f32 v{x+1}, v{d+2}, v{d+3}")
        a(f"v_cvt_pk_bf16_f32 v{x+2}, v{d+4}, v{d+5}")
        a(f"v_cvt_pk_bf16_f32 v{x+3}, v{d+6}, v{d+7}")
    def st3(n):
        x = XY[n % 4]
        a(f"v_permlane32_swap_b32 v{x}, v{x+2}")
        a(f"v_permlane32_swap_b32 v{x+1}, v{x+3}")
    def st4(n):
        T, j2, sel = groups[n]
        x = XY[n % 4]
        for k in range(2):
            ac = AC + 4 * (j2*4 + 2*k + sel)
            c = "0" if T == 0 else vr(ac)
            a(f"v_mfma_f32_16x16x16_bf16 {vr(ac)}, {vr(x+2*k,2)}, {vr(PP+2*T,2)}, {c}")
    for n in range(NG + 4):
        if n < NG:
            st1(n)
        else:
            a("s_nop 1")
        if 0 <= n - 4 < NG:
            st4(n - 4)
        else:
            a("s_nop 1")
        if 0 <= n - 3 < NG:
            st3(n - 3)
        else:
            a("s_nop 1")
        if 0 <= n - 2 < NG:
            st2(n - 2)
        else:
            a("s_nop 3")
    a("s_nop 7")
    a("s_nop 7")
    a("v_lshlrev_b32 v8, 12, v14")
    a("v_lshl_add_u32 v8, v3, 4, v8")
    a("s_lshl_b32 s10, s9, 16")
    a("s_lshl_b32 s11, s3, 9")
    a("s_add_u32 s10, s10, s11")
    a(f"s_add_u32 s10, s10, {g.B_PART}")
    for ai in range(8):
        a(f"buffer_store_dwordx4 {vr(AC+4*ai)}, v8, s[56:59], s10 offen offset:{ai*64} sc1")
    g.stamp(3)
    signal(128, "p")
    poll(128, 64, "p")
    g.stamp(4)
    a("v_lshlrev_b32 v8, 7, v1")
    a("s_lshl_b32 s10, s4, 3")
    a(f"s_add_u32 s10, s10, {g.B_STAT}")
    a("buffer_load_dwordx2 v[12:13], v8, s[56:59], s10 offen sc1")
    a("v_lshrrev_b32 v10, 3, v1")
    a("v_lshlrev_b32 v8, 16, v10")
    a("v_and_b32 v9, 7, v1")
    a("v_lshl_add_u32 v8, v9, 4, v8")
    a("s_lshl_b32 s10, s4, 12")
    a("s_lshl_b32 s11, s14, 10")
    a("s_add_u32 s10, s10, s11")
    a("s_lshl_b32 s11, s3, 7")
    a("s_add_u32 s10, s10, s11")
    a(f"s_add_u32 s10, s10, {g.B_PART}")
    for i in range(8):
        a(f"buffer_load_dwordx4 {vr(32+4*i)}, v8, s[56:59], s10 offen sc1")
        if i < 7:
            a("s_add_u32 s10, s10, 0x80000")
    a("s_lshl_b32 s11, s3, 14")
    a("v_lshlrev_b32 v11, 4, v1")
    a("v_add_u32 v11, s11, v11")
    for i in range(16):
        a(f"ds_read_b128 {vr(128+4*i)}, v11 offset:{i*1024}")
    a("s_waitcnt vmcnt(8)")
    def allred32(op, reg, tmp):
        for r in (1, 2, 4, 8):
            a("s_nop 1")
            a(f"{op}_dpp v{reg}, v{reg}, v{reg} row_ror:{r} row_mask:0xf bank_mask:0xf")
        a(f"v_mov_b32 v{tmp}, v{reg}")
        a("s_nop 1")
        a(f"v_permlane16_swap_b32 v{reg}, v{tmp}")
        a("s_nop 1")
        a(f"{op} v{reg}, v{reg}, v{tmp}")
    a("v_mov_b32 v14, v12")
    allred32("v_max_f32", 14, 8)
    a("v_sub_f32 v12, v12, v14")
    a("v_mul_f32 v12, s15, v12")
    a("v_exp_f32 v12, v12")
    a("s_nop 0")
    a("v_mul_f32 v13, v12, v13")
    allred32("v_add_f32", 13, 8)
    a("v_rcp_f32 v14, v13")
    a("s_nop 0")
    a("v_fma_f32 v15, -v13, v14, 1.0")
    a("v_fmac_f32 v14, v15, v14")
    a("v_mul_f32 v12, v12, v14")
    a("v_lshlrev_b32 v10, 2, v10")
    for i in range(8):
        a(f"v_add_u32 v8, {i*32}, v10")
        a(f"ds_bpermute_b32 v{64+i}, v8, v12")
    a("s_waitcnt vmcnt(0) lgkmcnt(0)")
    for b in range(2):
        for k in range(4):
            a(f"v_mul_f32 v{72+4*b+k}, v{64+4*b}, v{32+16*b+k}")
        for i in range(1, 4):
            for k in range(4):
                a(f"v_fmac_f32 v{72+4*b+k}, v{64+4*b+i}, v{32+16*b+4*i+k}")
    a("s_nop 1")
    for k in range(8):
        a(f"v_add_f32_dpp v{72+k}, v{72+k}, v{72+k} row_ror:8 row_mask:0xf bank_mask:0xf")
    for k in range(8):
        a(f"v_mov_b32 v{80+k}, v{72+k}")
    a("s_nop 1")
    for k in range(8):
        a(f"v_permlane16_swap_b32 v{72+k}, v{80+k}")
    a("s_nop 1")
    for k in range(8):
        a(f"v_add_f32 v{72+k}, v{72+k}, v{80+k}")
    for k in range(8):
        a(f"v_mov_b32 v{80+k}, v{72+k}")
    a("s_nop 1")
    for k in range(8):
        a(f"v_permlane32_swap_b32 v{72+k}, v{80+k}")
    a("s_nop 1")
    for k in range(8):
        a(f"v_add_f32 v{72+k}, v{72+k}, v{80+k}")
    a("s_lshl_b32 s10, s3, 8")
    a(f"s_add_u32 s10, s10, {LB_CL}")
    a("v_lshlrev_b32 v8, 4, v9")
    a("v_add_u32 v8, s10, v8")
    a("s_mov_b64 exec, 0xff")
    a(f"ds_write_b128 v8, {vr(72)}")
    a(f"ds_write_b128 v8, {vr(76)} offset:128")
    a("s_mov_b64 exec, -1")
    a("v_lshlrev_b32 v8, 2, v7")
    a("v_add_u32 v8, s10, v8")
    a("s_waitcnt lgkmcnt(0)")
    for b in range(2):
        for i in range(16):
            a(f"ds_read_b32 v{32+16*b+i}, v8 offset:{b*128 + i*8}")
    for k in range(16):
        a(f"v_mov_b32 v{240+k}, 0")
    a("s_waitcnt lgkmcnt(0)")
    for i in range(16):
        for w in range(4):
            a(f"v_lshlrev_b32 v8, 16, v{128+4*i+w}")
            a(f"v_and_b32 v9, 0xffff0000, v{128+4*i+w}")
            for b in range(2):
                a(f"v_fmac_f32 v{240+8*b+2*w}, v8, v{32+16*b+i}")
                a(f"v_fmac_f32 v{240+8*b+2*w+1}, v9, v{32+16*b+i}")
    a("v_lshlrev_b32 v8, 10, v7")
    a("v_and_b32 v9, 31, v1")
    a("v_lshl_add_u32 v8, v9, 5, v8")
    a("v_add_u32 v8, s11, v8")
    for b in range(2):
        a(f"ds_write_b128 v8, {vr(240+8*b)} offset:{b*2048}")
        a(f"ds_write_b128 v8, {vr(244+8*b)} offset:{b*2048+16}")
    a("s_waitcnt lgkmcnt(0)")
    a("s_barrier")
    a("v_and_b32 v8, 255, v0")
    a("v_lshlrev_b32 v8, 2, v8")
    a("v_lshrrev_b32 v9, 8, v0")
    a("v_lshl_add_u32 v8, v9, 11, v8")
    a("v_add_u32 v9, 0x10000, v8")
    for w in range(8):
        for hf in range(2):
            r = "v8" if w < 4 else "v9"
            a(f"ds_read_b32 v{32+2*w+hf}, {r} offset:{(w%4)*16384 + hf*1024}")
    a("s_waitcnt lgkmcnt(0)")
    for st in (8, 4, 2, 1):
        for i in range(st):
            a(f"v_add_f32 v{32+i}, v{32+i}, v{32+i+st}")
    a("s_lshl_b32 s10, s9, 11")
    a(f"s_add_u32 s10, s10, {g.CTX_P}")
    a("v_lshlrev_b32 v8, 2, v0")
    a("buffer_store_dword v32, v8, s[56:59], s10 offen")
    g.stamp(5)
    a("s_branch L_end")
```

```python
import sys

OUT = []
def a(s):
    OUT.append(s)

A_PART = 0x00000
A_STAT = 0x30000
QABS   = 0x40000
B_STAT = 0x60000
CTX_P  = 0x64000
OUT_P  = 0x90000
STAMP  = 0xC0000
B_PART = 0x100000
WS_SIZE = 0x10000000

C1 = 0x3DB8AA3B
LDS_K1 = 147456

STAMPS = "--stamps" in sys.argv

def srd(dst, lo, hi, size):
    a(f"s_mov_b32 s{dst}, s{lo}")
    a(f"s_mov_b32 s{dst+1}, s{hi}")
    a(f"s_mov_b32 s{dst+2}, {size:#x}")
    a(f"s_mov_b32 s{dst+3}, 0x20000")

def srd_off(dst, lo, hi, soff, size):
    a(f"s_add_u32 s{dst}, s{lo}, s{soff}")
    a(f"s_addc_u32 s{dst+1}, s{hi}, 0")
    a(f"s_mov_b32 s{dst+2}, {size:#x}")
    a(f"s_mov_b32 s{dst+3}, 0x20000")

def load_kernargs():
    a("s_load_dwordx16 s[16:31], s[0:1], 0")
    a("s_load_dwordx8 s[32:39], s[0:1], 64")
    a("s_load_dwordx4 s[40:43], s[0:1], 96")

P_AX, P_K, P_V, P_WQ, P_WO, P_BX, P_CKV, P_BWQ, P_WUK, P_WUV, P_BWO, P_OUT, P_DBG, P_WS = [16 + 2 * i for i in range(14)]

def vr(b, n=4):
    return f"v[{b}:{b+n-1}]"

def stamp(idx):
    if not STAMPS:
        return
    lab = f"L_st{len(OUT)}"
    a(f"s_cmp_lg_u32 s3, 0")
    a(f"s_cbranch_scc1 {lab}")
    a("s_memrealtime s[10:11]")
    a("s_waitcnt lgkmcnt(0)")
    a("v_mov_b32 v8, s10")
    a("v_mov_b32 v9, s11")
    a(f"s_lshl_b32 s12, s2, 7")
    a(f"s_add_u32 s12, s12, {STAMP + idx * 8}")
    a("v_mov_b32 v10, 0")
    a("s_mov_b64 s[10:11], exec")
    a("s_mov_b64 exec, 1")
    a("buffer_store_dwordx2 v[8:9], v10, s[56:59], s12 offen")
    a("s_mov_b64 exec, s[10:11]")
    a(f"{lab}:")

def qproj_issue():
    a("v_lshrrev_b32 v8, 5, v1")
    a("v_lshlrev_b32 v7, 4, v8")
    a("v_lshlrev_b32 v4, 13, v8")
    a("v_and_b32 v8, 31, v1")
    a("v_lshl_add_u32 v4, v8, 4, v4")
    a(f"s_mul_i32 s10, s3, {56*8192}")
    a("s_lshl_b32 s11, s4, 9")
    a("s_add_u32 s10, s10, s11")
    for i in range(28):
        a(f"buffer_load_dwordx4 {vr(128+4*i)}, v4, s[44:47], s10 offen")
        if i < 27:
            a("s_add_u32 s10, s10, 0x4000")

def qproj_compute(xs, acc, later):
    nb = len(xs)
    for b in range(nb):
        for e in range(8):
            a(f"v_mov_b32 v{acc+8*b+e}, 0")
    for i in range(28):
        a(f"s_waitcnt vmcnt({later + 27 - i})")
        for b in range(nb):
            a(f"v_bfe_u32 v{8+2*b}, s{xs[b]+i}, v7, 16")
            a(f"v_lshlrev_b32 v{9+2*b}, 16, v{8+2*b}")
        for b in range(nb):
            for w in range(4):
                a(f"v_dot2_f32_bf16 v{acc+8*b+2*w}, v{128+4*i+w}, v{8+2*b}, v{acc+8*b+2*w}")
                a(f"v_dot2_f32_bf16 v{acc+8*b+2*w+1}, v{128+4*i+w}, v{9+2*b}, v{acc+8*b+2*w+1}")

def qproj_reduce(nb, acc, lds_part, lds_q):
    a("v_lshrrev_b32 v8, 5, v1")
    a("s_lshl_b32 s10, s3, 1")
    a("v_add_u32 v8, s10, v8")
    a("v_lshlrev_b32 v8, 10, v8")
    a("v_and_b32 v9, 31, v1")
    a("v_lshl_add_u32 v8, v9, 5, v8")
    a("s_nop 2")
    for b in range(nb):
        a(f"ds_write_b128 v8, {vr(acc+8*b)} offset:{lds_part + b*16384}")
        a(f"ds_write_b128 v8, {vr(acc+8*b+4)} offset:{lds_part + b*16384 + 16}")
    a("s_waitcnt lgkmcnt(0)")
    a("s_barrier")
    lab = f"L_qr{len(OUT)}"
    if nb == 1:
        a("s_cmp_ge_u32 s3, 4")
        a(f"s_cbranch_scc1 {lab}")
    a("v_and_b32 v8, 255, v0")
    a("v_lshlrev_b32 v8, 2, v8")
    a("v_lshrrev_b32 v9, 8, v0")
    a("v_lshl_add_u32 v8, v9, 14, v8")
    for i in range(16):
        a(f"ds_read_b32 v{128+i}, v8 offset:{lds_part + i*1024}")
    a("s_waitcnt lgkmcnt(0)")
    for st in (8, 4, 2, 1):
        for i in range(st):
            a(f"v_add_f32 v{128+i}, v{128+i}, v{128+i+st}")
    a("v_cvt_pk_bf16_f32 v128, v128, v128")
    a("v_lshlrev_b32 v8, 1, v0")
    a(f"ds_write_b16 v8, v128 offset:{lds_q}")
    a("s_waitcnt lgkmcnt(0)")
    a(f"{lab}:")
    a("s_barrier")

RING = [32, 64, 96]
QOP = 16
ACC = 128
SC = 192
PP = 216
DD = 228
PT = 236
LA_QPART = 0
LA_Q = 16384
LA_OPART = 17408
LA_STAT = 25600

def a_tile_issue(kind, t, buf):
    base = RING[buf]
    a(f"s_add_u32 s10, s7, {t*8192}")
    if kind == "K":
        a("s_add_u32 s11, s10, 0x1000")
        for u in range(2):
            for j in range(4):
                a(f"buffer_load_dwordx4 {vr(base+(u*4+j)*4)}, v5, s[48:51], s{10+u} offen offset:{j*128} nt")
    else:
        for i in range(4):
            for hf in range(2):
                a(f"buffer_load_dwordx4 {vr(base+(i*2+hf)*4)}, v6, s[52:55], s10 offen offset:{i*512+hf*256} nt")

def a_unit_head():
    a("L_A_head:")
    load_kernargs()
    a("s_lshl_b32 s7, s7, 13")
    a("s_lshl_b32 s8, s5, 4")
    a("s_add_u32 s8, s8, s4")
    a("s_lshl_b32 s9, s8, 21")
    a("s_mul_i32 s10, s5, 896")
    a("s_mul_i32 s11, s3, 112")
    a("s_add_u32 s10, s10, s11")
    a("s_waitcnt lgkmcnt(0)")
    a(f"s_add_u32 s12, s{P_AX}, s10")
    a(f"s_addc_u32 s13, s{P_AX+1}, 0")
    a("s_load_dwordx16 s[64:79], s[12:13], 0")
    a("s_load_dwordx8 s[80:87], s[12:13], 64")
    a("s_load_dwordx4 s[88:91], s[12:13], 96")
    srd(44, P_WQ, P_WQ+1, 448*8192)
    srd_off(48, P_K, P_K+1, 9, 1 << 21)
    srd_off(52, P_V, P_V+1, 9, 1 << 21)
    srd(56, P_WS, P_WS+1, WS_SIZE)
    a("s_mov_b32 s100, 0x05040100")
    a("s_mov_b32 s101, 0x07060302")
    a(f"s_mov_b32 s15, {C1:#x}")
    qproj_issue()
    a("v_and_b32 v8, 7, v2")
    a("v_lshlrev_b32 v5, 9, v8")
    a("v_lshrrev_b32 v8, 3, v2")
    a("v_lshl_add_u32 v5, v8, 6, v5")
    a("v_lshl_add_u32 v5, v3, 4, v5")
    a("v_lshlrev_b32 v6, 11, v3")
    a("v_lshl_add_u32 v6, v2, 4, v6")
    for t in range(3):
        a_tile_issue("K", t, t)
    a("s_waitcnt lgkmcnt(0)")
    qproj_compute([64], 240, 24)
    qproj_reduce(1, 240, LA_QPART, LA_Q)
    a("v_and_b32 v8, 1, v2")
    a("v_lshlrev_b32 v8, 6, v8")
    a("v_lshl_add_u32 v8, v3, 4, v8")
    for j in range(4):
        a(f"ds_read_b128 {vr(QOP+4*j)}, v8 offset:{LA_Q + j*128}")
    a("s_waitcnt lgkmcnt(0)")

def cross_g(op, reg, tmp):
    a(f"v_mov_b32 v{tmp}, v{reg}")
    a("s_nop 1")
    a(f"v_permlane32_swap_b32 v{reg}, v{tmp}")
    a("s_nop 1")
    a(f"{op} v{reg}, v{reg}, v{tmp}")
    a(f"v_mov_b32 v{tmp}, v{reg}")
    a("s_nop 1")
    a(f"v_permlane16_swap_b32 v{reg}, v{tmp}")
    a("s_nop 1")
    a(f"{op} v{reg}, v{reg}, v{tmp}")

def a_unit_body(n):
    seq = [("K", t) for t in range(n)] + [("V", t) for t in range(n)]
    N = 2 * n
    for idx, (kind, t) in enumerate(seq):
        buf = idx % 3
        base = RING[buf]
        outst = min(idx + 2, N - 1) - idx
        a(f"s_waitcnt vmcnt({8*outst})")
        if kind == "K":
            for j in range(4):
                for u in range(2):
                    c = "0" if j == 0 else vr(DD+4*u)
                    a(f"v_mfma_f32_16x16x32_bf16 {vr(DD+4*u)}, {vr(base+(u*4+j)*4)}, {vr(QOP+4*j)}, {c}")
            if idx + 3 < N:
                a_tile_issue(seq[idx+3][0], seq[idx+3][1], buf)
            else:
                a("s_nop 7")
            a("s_nop 1")
            for i in range(4):
                a(f"v_permlane32_swap_b32 v{DD+i}, v{DD+4+i}")
            a("s_nop 0")
            for i in range(4):
                a(f"v_add_f32_dpp v{SC+4*t+i}, v{DD+4+i}, v{DD+i} quad_perm:[1,0,3,2] row_mask:0xf bank_mask:0xf")
            a(f"v_cvt_pk_bf16_f32 v8, v{SC+4*t}, v{SC+4*t+1}")
            a(f"v_cvt_pk_bf16_f32 v9, v{SC+4*t+2}, v{SC+4*t+3}")
            a(f"v_lshlrev_b32 v{SC+4*t}, 16, v8")
            a(f"v_and_b32 v{SC+4*t+1}, 0xffff0000, v8")
            a(f"v_lshlrev_b32 v{SC+4*t+2}, 16, v9")
            a(f"v_and_b32 v{SC+4*t+3}, 0xffff0000, v9")
            if t == n - 1:
                ns = 4 * n
                a(f"v_max_f32 v12, v{SC}, v{SC+1}")
                for k in range(2, ns, 2):
                    a(f"v_max3_f32 v12, v12, v{SC+k}, v{SC+k+1}")
                cross_g("v_max_f32", 12, 8)
                a("v_mul_f32 v9, s15, v12")
                for k in range(ns):
                    a(f"v_fma_f32 v{SC+k}, v{SC+k}, s15, -v9")
                for k in range(ns):
                    a(f"v_exp_f32 v{SC+k}, v{SC+k}")
                a("s_nop 0")
                a(f"v_add_f32 v13, v{SC}, v{SC+1}")
                for k in range(2, ns):
                    a(f"v_add_f32 v13, v13, v{SC+k}")
                for k in range(0, ns, 2):
                    a(f"v_cvt_pk_bf16_f32 v{PP+k//2}, v{SC+k}, v{SC+k+1}")
                cross_g("v_add_f32", 13, 8)
        else:
            cnt = 0
            for hf in range(2):
                for w in range(4):
                    R = [base + (i*2+hf)*4 + w for i in range(4)]
                    T = PT + 4 * (cnt % 4)
                    a(f"v_perm_b32 v{T}, v{R[1]}, v{R[0]}, s100")
                    a(f"v_perm_b32 v{T+1}, v{R[3]}, v{R[2]}, s100")
                    a(f"v_perm_b32 v{T+2}, v{R[1]}, v{R[0]}, s101")
                    a(f"v_perm_b32 v{T+3}, v{R[3]}, v{R[2]}, s101")
                    if cnt >= 1:
                        ph, pw, pT = prev
                        for e in range(2):
                            ac = ACC + 4 * (ph*8 + 2*pw + e)
                            c = "0" if t == 0 else vr(ac)
                            a(f"v_mfma_f32_16x16x16_bf16 {vr(ac)}, {vr(PP+2*t,2)}, {vr(pT+2*e,2)}, {c}")
                    prev = (hf, w, T)
                    cnt += 1
            a("s_nop 1")
            ph, pw, pT = prev
            for e in range(2):
                ac = ACC + 4 * (ph*8 + 2*pw + e)
                c = "0" if t == 0 else vr(ac)
                a(f"v_mfma_f32_16x16x16_bf16 {vr(ac)}, {vr(PP+2*t,2)}, {vr(pT+2*e,2)}, {c}")
            if idx + 3 < N:
                a_tile_issue(seq[idx+3][0], seq[idx+3][1], buf)
    a("s_branch L_A_tail")

def a_unit_tail():
    a("L_A_tail:")
    a("s_nop 7")
    a("s_nop 7")
    for k in range(16):
        a(f"v_mov_b32 v{32+k}, v{ACC+4*k}")
    a("s_lshl_b32 s10, s3, 10")
    a("v_lshlrev_b32 v8, 5, v2")
    a("v_add_u32 v8, s10, v8")
    a("s_lshl_b32 s11, s3, 3")
    a("v_mov_b32 v9, s11")
    a("s_mov_b64 exec, 0xffff")
    a(f"ds_write_b128 v8, {vr(32)} offset:{LA_OPART}")
    a(f"ds_write_b128 v8, {vr(36)} offset:{LA_OPART+16}")
    a(f"ds_write_b128 v8, {vr(40)} offset:{LA_OPART+512}")
    a(f"ds_write_b128 v8, {vr(44)} offset:{LA_OPART+528}")
    a("s_mov_b64 exec, 1")
    a(f"ds_write_b64 v9, v[12:13] offset:{LA_STAT}")
    a("s_mov_b64 exec, -1")
    a("s_waitcnt lgkmcnt(0)")
    a("s_barrier")
    a("s_cmp_ge_u32 s3, 4")
    a("s_cbranch_scc1 L_end")
    a("v_mov_b32 v8, 0")
    for k in range(4):
        a(f"ds_read_b128 {vr(32+4*k)}, v8 offset:{LA_STAT+16*k}")
    a("v_lshlrev_b32 v9, 2, v0")
    for w in range(8):
        a(f"ds_read_b32 v{48+w}, v9 offset:{LA_OPART+1024*w}")
    a("s_waitcnt lgkmcnt(0)")
    a("v_max_f32 v12, v32, v34")
    a("v_max3_f32 v12, v12, v36, v38")
    a("v_max3_f32 v12, v12, v40, v42")
    a("v_max3_f32 v12, v12, v44, v46")
    for w in range(8):
        a(f"v_sub_f32 v{32+2*w}, v{32+2*w}, v12")
        a(f"v_mul_f32 v{32+2*w}, s15, v{32+2*w}")
        a(f"v_exp_f32 v{32+2*w}, v{32+2*w}")
    a("s_nop 0")
    a("v_mul_f32 v13, v32, v33")
    a("v_mul_f32 v14, v32, v48")
    for w in range(1, 8):
        a(f"v_fmac_f32 v13, v{32+2*w}, v{33+2*w}")
        a(f"v_fmac_f32 v14, v{32+2*w}, v{48+w}")
    a("s_mul_i32 s10, s8, 6")
    a("s_add_u32 s10, s10, s6")
    a("s_lshl_b32 s11, s10, 10")
    a(f"s_add_u32 s11, s11, {A_PART}")
    a("buffer_store_dword v14, v9, s[56:59], s11 offen")
    a("s_lshl_b32 s11, s10, 3")
    a(f"s_add_u32 s11, s11, {A_STAT}")
    a("v_cmp_eq_u32 vcc, 0, v0")
    a("s_and_saveexec_b64 s[12:13], vcc")
    a("s_cbranch_execz L_end")
    a("buffer_store_dwordx2 v[12:13], v8, s[56:59], s11 offen")
    a("s_branch L_end")

def main_kernel():
    a(".globl k1_kernel\n.p2align 8\n.type k1_kernel,@function\nk1_kernel:")
    a("s_cmp_ge_u32 s2, 256")
    a("s_cbranch_scc1 L_end")
    a("v_lshrrev_b32 v8, 6, v0")
    a("v_and_b32 v1, 63, v0")
    a("v_readfirstlane_b32 s3, v8")
    a("v_and_b32 v2, 15, v1")
    a("v_lshrrev_b32 v3, 4, v1")
    a("s_and_b32 s8, s2, 7")
    a("s_lshr_b32 s9, s2, 3")
    a("s_cmp_lt_u32 s9, 8")
    a("s_cbranch_scc1 L_B1")
    a("s_cmp_lt_u32 s9, 16")
    a("s_cbranch_scc1 L_B2")
    a("s_sub_u32 s9, s9, 16")
    a("s_lshr_b32 s4, s9, 3")
    a("s_lshl_b32 s4, s4, 3")
    a("s_add_u32 s4, s4, s8")
    a("s_lshr_b32 s5, s9, 2")
    a("s_and_b32 s5, s5, 1")
    a("s_and_b32 s6, s9, 3")
    a("s_mul_i32 s7, s6, 48")
    a("s_mul_i32 s10, s3, 6")
    a("s_add_u32 s7, s7, s10")
    a("s_mov_b32 s14, 6")
    a_unit_head()
    a("s_cmp_eq_u32 s14, 6")
    a("s_cbranch_scc0 L_A4")
    a_unit_body(6)
    a("L_A4:")
    a_unit_body(4)
    a_unit_tail()
    import gen_b
    gen_b.emit(sys.modules[__name__])
    a("L_end:")
    a("s_endpgm")

def kd(name, vgpr, sgpr=102):
    a(f""".amdhsa_kernel {name}
  .amdhsa_next_free_vgpr {vgpr}
  .amdhsa_next_free_sgpr {sgpr}
  .amdhsa_accum_offset {(vgpr+3)//4*4}
  .amdhsa_group_segment_fixed_size 0
  .amdhsa_kernarg_size 112
  .amdhsa_user_sgpr_count 2
  .amdhsa_user_sgpr_kernarg_segment_ptr 1
  .amdhsa_system_sgpr_workgroup_id_x 1
.end_amdhsa_kernel""")

L2_O = 0
L2_RED = 2048
L2_FLAG = 18432
LDS_K2 = 18688

def final_kernel():
    a(".globl k2_kernel\n.p2align 8\n.type k2_kernel,@function\nk2_kernel:")
    a("s_cmp_ge_u32 s2, 224")
    a("s_cbranch_scc1 L2_end")
    load_kernargs()
    a("v_lshrrev_b32 v8, 6, v0")
    a("v_and_b32 v1, 63, v0")
    a("v_readfirstlane_b32 s3, v8")
    a("s_and_b32 s4, s2, 15")
    a("s_lshr_b32 s5, s2, 4")
    a("s_cmp_ge_u32 s5, 7")
    a("s_cselect_b32 s6, 1, 0")
    a("s_mul_i32 s7, s6, 7")
    a("s_sub_u32 s7, s5, s7")
    a(f"s_mov_b32 s15, {C1:#x}")
    a("s_waitcnt lgkmcnt(0)")
    a("s_cmp_eq_u32 s6, 1")
    a(f"s_cselect_b32 s44, s{P_BWO}, s{P_WO}")
    a(f"s_cselect_b32 s45, s{P_BWO+1}, s{P_WO+1}")
    a(f"s_mov_b32 s46, {4096*896:#x}")
    a("s_mov_b32 s47, 0x20000")
    srd(56, P_WS, P_WS+1, WS_SIZE)
    srd(60, P_DBG, P_DBG+1, 256)
    srd(48, P_OUT, P_OUT+1, 1792*2)
    a("v_lshrrev_b32 v2, 3, v1")
    a("v_and_b32 v3, 7, v1")
    a("s_movk_i32 s10, 896")
    a("v_mul_lo_u32 v4, v2, s10")
    a("v_lshl_add_u32 v4, v3, 4, v4")
    a("s_lshl_b32 s10, s4, 8")
    a("s_lshl_b32 s11, s3, 6")
    a("s_add_u32 s10, s10, s11")
    a("s_mul_i32 s10, s10, 896")
    a("s_lshl_b32 s11, s7, 7")
    a("s_add_u32 s10, s10, s11")
    for i in range(8):
        a(f"buffer_load_dwordx4 {vr(32+4*i)}, v4, s[44:47], s10 offen nt")
        if i < 7:
            a(f"s_add_u32 s10, s10, {8*896}")
    a("v_lshlrev_b32 v5, 2, v0")
    a("s_cmp_eq_u32 s6, 1")
    a("s_cbranch_scc1 L2_B")
    a("s_mul_i32 s10, s4, 6")
    a("s_lshl_b32 s11, s10, 10")
    a(f"s_add_u32 s11, s11, {A_PART}")
    a("s_lshl_b32 s12, s10, 3")
    a(f"s_add_u32 s12, s12, {A_STAT}")
    a("v_mov_b32 v6, 0")
    for b in range(2):
        for s in range(6):
            a(f"s_add_u32 s13, s11, {b*96*1024 + s*1024}")
            a(f"buffer_load_dword v{64+b*6+s}, v5, s[56:59], s13 offen")
        a(f"s_add_u32 s13, s12, {b*96*8}")
        for k in range(3):
            a(f"buffer_load_dwordx4 {vr(80+b*12+4*k)}, v6, s[56:59], s13 offen offset:{16*k}")
    a("s_waitcnt vmcnt(0)")
    for b in range(2):
        st = 80 + b*12
        a(f"v_max_f32 v8, v{st}, v{st+2}")
        a(f"v_max3_f32 v8, v8, v{st+4}, v{st+6}")
        a(f"v_max3_f32 v8, v8, v{st+8}, v{st+10}")
        for s in range(6):
            a(f"v_sub_f32 v{st+2*s}, v{st+2*s}, v8")
            a(f"v_mul_f32 v{st+2*s}, s15, v{st+2*s}")
            a(f"v_exp_f32 v{st+2*s}, v{st+2*s}")
        a("s_nop 0")
        a(f"v_mul_f32 v9, v{st}, v{st+1}")
        a(f"v_mul_f32 v{10+b}, v{st}, v{64+b*6}")
        for s in range(1, 6):
            a(f"v_fmac_f32 v9, v{st+2*s}, v{st+2*s+1}")
            a(f"v_fmac_f32 v{10+b}, v{st+2*s}, v{64+b*6+s}")
        a("v_rcp_f32 v12, v9")
        a("s_nop 0")
        a("v_fma_f32 v13, -v9, v12, 1.0")
        a("v_fmac_f32 v12, v13, v12")
        a(f"v_mul_f32 v{10+b}, v{10+b}, v12")
    a("s_branch L2_join")
    a("L2_B:")
    a("s_lshl_b32 s11, s4, 13")
    a(f"s_add_u32 s11, s11, {CTX_P}")
    for qt in range(4):
        a(f"s_add_u32 s13, s11, {qt*2048}")
        for b in range(2):
            a(f"buffer_load_dword v{64+b*4+qt}, v5, s[56:59], s13 offen offset:{b*1024}")
    a("s_waitcnt vmcnt(0)")
    for b in range(2):
        a(f"v_add_f32 v{10+b}, v{64+b*4}, v{65+b*4}")
        a(f"v_add_f32 v12, v{66+b*4}, v{67+b*4}")
        a(f"v_add_f32 v{10+b}, v{10+b}, v12")
    a("L2_join:")
    a("v_cvt_pk_bf16_f32 v12, v10, v11")
    a("v_lshlrev_b32 v10, 16, v12")
    a("v_and_b32 v11, 0xffff0000, v12")
    a("v_lshlrev_b32 v8, 3, v0")
    a(f"ds_write_b64 v8, v[10:11] offset:{L2_O}")
    a("s_waitcnt lgkmcnt(0)")
    a("s_barrier")
    a("s_lshl_b32 s10, s3, 9")
    a("v_lshlrev_b32 v8, 3, v2")
    a("v_add_u32 v8, s10, v8")
    for i in range(8):
        a(f"ds_read_b64 v[{64+2*i}:{65+2*i}], v8 offset:{L2_O + i*64}")
    for k in range(16):
        a(f"v_mov_b32 v{96+k}, 0")
    a("s_waitcnt lgkmcnt(0)")
    for i in range(8):
        for w in range(4):
            a(f"v_lshlrev_b32 v8, 16, v{32+4*i+w}")
            a(f"v_and_b32 v9, 0xffff0000, v{32+4*i+w}")
            for b in range(2):
                a(f"v_fmac_f32 v{96+8*b+2*w}, v8, v{64+2*i+b}")
                a(f"v_fmac_f32 v{96+8*b+2*w+1}, v9, v{64+2*i+b}")
    a("v_lshlrev_b32 v8, 6, v0")
    for k in range(4):
        a(f"ds_write_b128 v8, {vr(96+4*k)} offset:{L2_RED+16*k}")
    a("s_waitcnt lgkmcnt(0)")
    a("s_barrier")
    a("s_cmp_ge_u32 s3, 2")
    a("s_cbranch_scc1 L2_wait")
    a("v_lshrrev_b32 v8, 3, v1")
    a("v_lshlrev_b32 v8, 6, v8")
    a("v_lshl_add_u32 v8, v3, 2, v8")
    a("s_lshl_b32 s10, s3, 5")
    a("v_add_u32 v8, s10, v8")
    for j in range(32):
        a(f"ds_read_b32 v{32+j}, v8 offset:{L2_RED + j*512}")
    a("s_waitcnt lgkmcnt(0)")
    for st in (16, 8, 4, 2, 1):
        for i in range(st):
            a(f"v_add_f32 v{32+i}, v{32+i}, v{32+i+st}")
    a("s_lshl_b32 s10, s5, 4")
    a("s_add_u32 s10, s10, s4")
    a("s_lshl_b32 s10, s10, 9")
    a(f"s_add_u32 s10, s10, {OUT_P}")
    a("buffer_store_dword v32, v5, s[56:59], s10 offen sc1")
    a("s_waitcnt vmcnt(0)")
    a("L2_wait:")
    a("s_barrier")
    a("s_cmp_lg_u32 s3, 0")
    a("s_cbranch_scc1 L2_wait2")
    a("v_mov_b32 v8, 1")
    a("s_lshl_b32 s10, s5, 2")
    a("v_mov_b32 v9, s10")
    a("s_mov_b64 exec, 1")
    a("buffer_atomic_add v8, v9, s[60:63], 0 offen sc0")
    a("s_waitcnt vmcnt(0)")
    a("v_mov_b32 v9, 0")
    a(f"ds_write_b32 v9, v8 offset:{L2_FLAG}")
    a("s_waitcnt lgkmcnt(0)")
    a("s_mov_b64 exec, -1")
    a("L2_wait2:")
    a("s_barrier")
    a("s_cmp_ge_u32 s3, 2")
    a("s_cbranch_scc1 L2_end")
    a("v_mov_b32 v9, 0")
    a(f"ds_read_b32 v8, v9 offset:{L2_FLAG}")
    a("s_waitcnt lgkmcnt(0)")
    a("v_readfirstlane_b32 s10, v8")
    a("s_cmp_lg_u32 s10, 15")
    a("s_cbranch_scc1 L2_end")
    a("s_lshl_b32 s10, s5, 13")
    a(f"s_add_u32 s10, s10, {OUT_P}")
    for h in range(16):
        if h == 8:
            a("s_add_u32 s10, s10, 0x1000")
        a(f"buffer_load_dword v{32+h}, v5, s[56:59], s10 offen offset:{(h%8)*512} sc1")
    a("s_waitcnt vmcnt(0)")
    for st in (8, 4, 2, 1):
        for i in range(st):
            a(f"v_add_f32 v{32+i}, v{32+i}, v{32+i+st}")
    a("v_cvt_pk_bf16_f32 v32, v32, v32")
    a("s_mul_i32 s10, s3, 896")
    a("s_mul_i32 s11, s6, 448")
    a("s_add_u32 s10, s10, s11")
    a("s_lshl_b32 s11, s7, 6")
    a("s_add_u32 s10, s10, s11")
    a("s_lshl_b32 s10, s10, 1")
    a("v_lshlrev_b32 v8, 1, v1")
    a("buffer_store_short v32, v8, s[48:51], s10 offen")
    a("L2_end:")
    a("s_endpgm")

def main():
    hdr = open("concat_heads__mha_block_cached__compressed_kv_cla__decode.s.ref").read().split("; Override launch geometry")[0]
    a(hdr.rstrip())
    a(f"; @launch kernel=k1_kernel grid=(256,1,1) block=(512,1,1) lds={LDS_K1}")
    a(f"; @launch kernel=k2_kernel grid=(224,1,1) block=(256,1,1) lds={LDS_K2}")
    a('.amdgcn_target "amdgcn-amd-amdhsa--gfx950"')
    a(".text")
    main_kernel()
    final_kernel()
    a('.section .rodata,"a"')
    a(".p2align 6")
    kd("k1_kernel", 256)
    a(".p2align 6")
    kd("k2_kernel", 112)
    print("\n".join(OUT))

if __name__ == "__main__":
    sys.path.insert(0, "scratch")
    sys.modules["gen"] = sys.modules[__name__]
    main()
```

```python
def emit(g):
    a, vr, srd = g.a, g.vr, g.srd

    poll = g.poll

    def signal(off, tag, n=0):
        a(f"s_waitcnt vmcnt({n})")
        g.stamp(18)
        a("s_barrier")
        g.stamp(19)
        a("s_cmp_lg_u32 s3, 0")
        a(f"s_cbranch_scc1 L_sg_{tag}")
        g.set_flag(off, 9)
        if g.STAMPS:
            a("s_waitcnt vmcnt(0)")
            g.stamp(20)
        a(f"L_sg_{tag}:")

    LB_Q = 32768
    LB_QA = 33792
    WUK = 32
    QOP = 16
    DD = 96
    SS = 112
    a("L_B1:")
    g.load_kernargs()
    a("s_lshr_b32 s4, s9, 2")
    a("s_lshl_b32 s10, s8, 1")
    a("s_add_u32 s4, s4, s10")
    a("s_and_b32 s14, s9, 3")
    a("v_and_b32 v8, 7, v2")
    a("v_lshlrev_b32 v5, 13, v8")
    a("v_lshrrev_b32 v8, 3, v2")
    a("v_lshl_add_u32 v5, v8, 6, v5")
    a("v_lshl_add_u32 v5, v3, 4, v5")
    a("s_lshl_b32 s10, s14, 8")
    a("s_lshl_b32 s11, s3, 5")
    a("s_add_u32 s10, s10, s11")
    a("s_lshl_b32 s10, s10, 13")
    a("s_lshl_b32 s11, s4, 9")
    a("s_add_u32 s10, s10, s11")
    a("s_waitcnt lgkmcnt(0)")
    srd(48, g.P_WUK, g.P_WUK+1, 1024*8192)
    srd(56, g.P_WS, g.P_WS+1, g.WS_SIZE)
    srd(60, g.P_DBG, g.P_DBG+1, 256)
    a("s_or_b32 s11, s2, s3")
    a("s_cmp_lg_u32 s11, 0")
    a("s_cbranch_scc1 L_B1_nn")
    a("s_memrealtime s[12:13]")
    a("s_waitcnt lgkmcnt(0)")
    a("s_or_b32 s12, s12, 1")
    a("v_mov_b32 v10, s12")
    a("v_mov_b32 v11, s13")
    a("v_mov_b32 v9, 0")
    a("s_mov_b64 exec, 1")
    a("buffer_store_dwordx2 v[10:11], v9, s[60:63], 0 offen sc1")
    a("s_mov_b64 exec, -1")
    a("L_B1_nn:")
    for u in range(4):
        for j in range(4):
            if u*4+j >= g.WB:
                a(f"s_waitcnt vmcnt({g.WB-1})")
            a(f"buffer_load_dwordx4 {vr(WUK+(u*4+j)*4)}, v5, s[48:51], s10 offen offset:{j*128} nt")
        if u < 3:
            a("s_add_u32 s10, s10, 0x10000")
    g.stamp(0)
    poll(64, 4, "qb", 4, True)
    a("v_bfe_u32 v8, v2, 1, 1")
    a("v_lshlrev_b32 v8, 13, v8")
    a("v_and_b32 v9, 1, v2")
    a("v_lshl_add_u32 v8, v9, 6, v8")
    a("v_lshl_add_u32 v8, v3, 4, v8")
    a("s_lshl_b32 s10, s4, 9")
    a(f"s_add_u32 s10, s10, {g.QV + 16384}")
    for j in range(4):
        a(f"buffer_load_dwordx4 {vr(QOP+4*j)}, v8, s[56:59], s10 offen offset:{j*128} sc1")
    a("s_waitcnt vmcnt(0)")
    g.stamp(1)
    for j in range(4):
        for u in range(4):
            c = "0" if j == 0 else vr(DD+4*u)
            a(f"v_mfma_f32_16x16x32_bf16 {vr(DD+4*u)}, {vr(WUK+(u*4+j)*4)}, {vr(QOP+4*j)}, {c}")
    a("s_nop 7")
    a("s_nop 1")
    for p in range(2):
        for i in range(4):
            a(f"v_permlane32_swap_b32 v{DD+8*p+i}, v{DD+8*p+4+i}")
    a("s_nop 0")
    for p in range(2):
        for i in range(4):
            a(f"v_add_f32_dpp v{SS+4*p+i}, v{DD+8*p+4+i}, v{DD+8*p+i} quad_perm:[1,0,3,2] row_mask:0xf bank_mask:0xf")
    for p in range(2):
        a(f"v_cvt_pk_bf16_f32 v{32+2*p}, v{SS+4*p}, v{SS+4*p+1}")
        a(f"v_cvt_pk_bf16_f32 v{33+2*p}, v{SS+4*p+2}, v{SS+4*p+3}")
        for i in range(4):
            if i % 2 == 0:
                a(f"v_lshlrev_b32 v8, 16, v{32+2*p+i//2}")
            else:
                a(f"v_and_b32 v8, 0xffff0000, v{32+2*p+i//2}")
            a(f"v_sub_f32 v{SS+4*p+i}, v{SS+4*p+i}, v8")
        a(f"v_cvt_pk_bf16_f32 v{36+2*p}, v{SS+4*p}, v{SS+4*p+1}")
        a(f"v_cvt_pk_bf16_f32 v{37+2*p}, v{SS+4*p+2}, v{SS+4*p+3}")
    a("v_bfe_u32 v8, v2, 1, 1")
    a("v_lshlrev_b32 v8, 10, v8")
    a("v_lshl_add_u32 v8, v3, 3, v8")
    a("s_lshl_b32 s10, s3, 6")
    a("v_add_u32 v8, s10, v8")
    a("s_mov_b32 exec_lo, 0x00050005")
    a("s_mov_b32 exec_hi, 0x00050005")
    for p in range(2):
        for hl in range(2):
            a(f"ds_write_b64 v8, {vr(32+4*hl+2*p,2)} offset:{LB_QA + hl*512 + p*32}")
    a("s_mov_b64 exec, -1")
    a("s_waitcnt lgkmcnt(0)")
    a("s_barrier")
    a("s_cmp_lg_u32 s3, 0")
    a("s_cbranch_scc1 L_B1_done")
    a("v_lshlrev_b32 v8, 4, v1")
    a(f"ds_read_b128 {vr(32)}, v8 offset:{LB_QA}")
    a(f"ds_read_b128 {vr(36)}, v8 offset:{LB_QA+1024}")
    a("v_lshrrev_b32 v8, 5, v1")
    a("v_lshlrev_b32 v8, 15, v8")
    a("v_and_b32 v9, 31, v1")
    a("v_lshl_add_u32 v8, v9, 4, v8")
    a("s_lshl_b32 s10, s4, 11")
    a("s_lshl_b32 s11, s14, 9")
    a("s_add_u32 s10, s10, s11")
    a(f"s_add_u32 s10, s10, {g.QABS}")
    a("s_add_u32 s11, s10, 0x10000")
    a("s_waitcnt lgkmcnt(0)")
    a(f"buffer_store_dwordx4 {vr(32)}, v8, s[56:59], s10 offen sc1")
    a(f"buffer_store_dwordx4 {vr(36)}, v8, s[56:59], s11 offen sc1")
    a("s_waitcnt vmcnt(0)")
    a("s_lshl_b32 s12, s4, 2")
    a("s_add_u32 s12, s12, s14")
    g.set_flag(128, 12)
    g.stamp(2)
    a("L_B1_done:")
    a("s_lshr_b32 s5, s14, 1")
    a("s_and_b32 s6, s14, 1")
    a(f"s_mul_i32 s7, s6, {g.TB}")
    a(f"s_add_u32 s7, s7, {4*g.TA}")
    a(f"s_mul_i32 s10, s3, {g.TB0}")
    a("s_add_u32 s7, s7, s10")
    a("s_add_u32 s6, s6, 4")
    g.wave_split(g.TB0, g.TBK)
    a("s_branch L_A_head")

    LB_SC = 131072
    LB_CL = 139264
    CK = 128
    QO = 32
    DQ = 64
    SC = 80
    PP = 112
    ID = 16
    a("L_B2:")
    g.load_kernargs()
    a("s_sub_u32 s9, s9, 8")
    a("s_lshl_b32 s9, s9, 3")
    a("s_add_u32 s9, s9, s8")
    a("s_lshr_b32 s5, s9, 5")
    a("s_and_b32 s6, s9, 31")
    a("s_lshr_b32 s4, s9, 2")
    a("s_and_b32 s14, s9, 3")
    a(f"s_mov_b32 s15, {g.C1:#x}")
    a("s_waitcnt lgkmcnt(0)")
    srd(44, g.P_CKV, g.P_CKV+1, 1 << 24)
    srd(48, g.P_WUV, g.P_WUV+1, 1024*8192)
    srd(56, g.P_WS, g.P_WS+1, g.WS_SIZE)
    srd(60, g.P_DBG, g.P_DBG+1, 256)
    g.stamp(0)
    a("v_and_b32 v8, 7, v2")
    a("v_lshlrev_b32 v5, 11, v8")
    a("v_lshrrev_b32 v8, 3, v2")
    a("v_lshl_add_u32 v5, v8, 6, v5")
    a("v_lshl_add_u32 v5, v3, 4, v5")
    a("s_lshl_b32 s10, s9, 18")
    a("s_lshl_b32 s11, s3, 8")
    a("s_add_u32 s10, s10, s11")
    for u in range(16):
        for j in range(2):
            if u*2+j >= g.WB:
                a(f"s_waitcnt vmcnt({g.WB-1})")
            a(f"buffer_load_dwordx4 {vr(CK+(u*2+j)*4)}, v5, s[44:47], s10 offen offset:{j*128} nt")
        if u < 15:
            a("s_add_u32 s10, s10, 0x4000")
    a("v_lshrrev_b32 v7, 5, v1")
    a("v_lshlrev_b32 v4, 13, v7")
    a("v_and_b32 v8, 31, v1")
    a("v_lshl_add_u32 v4, v8, 4, v4")
    a("s_lshl_b32 s10, s14, 8")
    a("s_lshl_b32 s11, s3, 5")
    a("s_add_u32 s10, s10, s11")
    a("s_lshl_b32 s10, s10, 13")
    a("s_lshl_b32 s11, s4, 9")
    a("s_add_u32 s10, s10, s11")
    a("s_lshl_b32 s11, s3, 13")
    a("s_add_u32 s11, s11, 0x10000")
    for i in range(8):
        a("s_mov_b32 m0, s11")
        a(f"s_waitcnt vmcnt({g.WB-1})")
        a("buffer_load_dwordx4 v4, s[48:51], s10 offen nt lds")
        a("s_add_u32 s10, s10, 0x4000")
        if i < 7:
            a("s_add_u32 s11, s11, 0x400")
    a("s_mov_b32 s98, s10")
    a("v_lshrrev_b32 v8, 3, v2")
    a("v_sub_u32 v8, v3, v8")
    a("v_lshlrev_b32 v8, 2, v8")
    a("v_bfe_u32 v9, v2, 1, 2")
    a("v_add_u32 v8, v8, v9")
    a("v_and_b32 v9, 1, v2")
    a("v_lshlrev_b32 v9, 4, v9")
    a("v_mov_b32 v10, 0x3f80")
    a("v_lshlrev_b32 v9, v9, v10")
    for sel in range(2):
        for w4 in range(4):
            a(f"v_cmp_eq_u32 vcc, {sel*8+w4}, v8")
            a("s_nop 1")
            a(f"v_cndmask_b32 v{ID+4*sel+w4}, 0, v9, vcc")
    a("s_waitcnt lgkmcnt(0)")
    poll(128, 64, "q", None, True)
    g.stamp(1)
    a("v_lshrrev_b32 v8, 1, v2")
    a("v_lshlrev_b32 v6, 11, v8")
    a("v_and_b32 v8, 1, v2")
    a("v_lshl_add_u32 v6, v8, 6, v6")
    a("v_lshl_add_u32 v6, v3, 4, v6")
    a("s_lshl_b32 s10, s5, 16")
    a("s_lshl_b32 s11, s3, 8")
    a("s_add_u32 s10, s10, s11")
    a(f"s_add_u32 s10, s10, {g.QABS}")
    for G in range(2):
        for hl in range(2):
            a(f"s_add_u32 s11, s10, {hl*32768 + G*16384}")
            for j2 in range(2):
                a(f"buffer_load_dwordx4 {vr(QO+((j2*2+G)*2+hl)*4)}, v6, s[56:59], s11 offen offset:{j2*128} sc1")
    a("v_and_b32 v8, 1, v1")
    a("v_cmp_eq_u32 s[96:97], 1, v8")
    a("v_lshlrev_b32 v11, 4, v1")
    a("s_lshl_b32 s11, s3, 13")
    a("v_add_u32 v15, s11, v11")
    a("s_waitcnt vmcnt(0)")
    g.stamp(2)
    for T in range(8):
        for j2 in range(2):
            for hl in range(2):
                for G in range(2):
                    for uu in range(2):
                        d = DQ + (G*2+uu)*4
                        c = "0" if (j2 == 0 and hl == 0) else vr(d)
                        a(f"v_mfma_f32_16x16x32_bf16 {vr(d)}, {vr(CK+((2*T+uu)*2+j2)*4)}, {vr(QO+((j2*2+G)*2+hl)*4)}, {c}")
        a("s_nop 7")
        a("s_nop 1")
        for G in range(2):
            for i in range(4):
                a(f"v_permlane32_swap_b32 v{DQ+G*8+i}, v{DQ+G*8+4+i}")
        a("s_nop 0")
        for i in range(4):
            a(f"v_add_f32_dpp v{DQ+i}, v{DQ+4+i}, v{DQ+i} quad_perm:[1,0,3,2] row_mask:0xf bank_mask:0xf")
            a(f"v_add_f32_dpp v{DQ+12+i}, v{DQ+8+i}, v{DQ+12+i} quad_perm:[1,0,3,2] row_mask:0xf bank_mask:0xf")
        for i in range(4):
            a(f"v_cndmask_b32 v{SC+4*T+i}, v{DQ+i}, v{DQ+12+i}, s[96:97]")
        a(f"ds_write_b128 v15, {vr(SC+4*T)} offset:{T*1024}")
    g.stamp(13)
    a("s_waitcnt lgkmcnt(0)")
    a("s_barrier")
    a("s_lshl_b32 s11, s3, 10")
    a("v_add_u32 v15, s11, v11")
    for w in range(8):
        a(f"ds_read_b128 {vr(SC+4*w)}, v15 offset:{w*8192}")
    a("s_waitcnt lgkmcnt(0)")
    for st in (4, 2, 1):
        for w in range(st):
            for i in range(4):
                a(f"v_add_f32 v{SC+4*w+i}, v{SC+4*w+i}, v{SC+4*(w+st)+i}")
    a(f"v_add_u32 v15, {LB_SC}, v15")
    a(f"ds_write_b128 v15, {vr(SC)}")
    a(f"v_add_u32 v11, {LB_SC}, v11")
    a("s_waitcnt lgkmcnt(0)")
    a("s_barrier")
    g.stamp(15)
    for T in range(8):
        a(f"ds_read_b128 {vr(SC+4*T)}, v11 offset:{T*1024}")
    a("s_waitcnt lgkmcnt(0)")
    a(f"v_max_f32 v12, v{SC}, v{SC+1}")
    for k in range(2, 32, 2):
        a(f"v_max3_f32 v12, v12, v{SC+k}, v{SC+k+1}")
    g.cross_g("v_max_f32", 12, 8)
    a("v_mul_f32 v9, s15, v12")
    for k in range(32):
        a(f"v_fma_f32 v{SC+k}, v{SC+k}, s15, -v9")
    for k in range(32):
        a(f"v_exp_f32 v{SC+k}, v{SC+k}")
    a("s_nop 0")
    a(f"v_add_f32 v13, v{SC}, v{SC+1}")
    for k in range(2, 32):
        a(f"v_add_f32 v13, v13, v{SC+k}")
    for k in range(0, 32, 2):
        a(f"v_cvt_pk_bf16_f32 v{PP+k//2}, v{SC+k}, v{SC+k+1}")
    g.cross_g("v_add_f32", 13, 8)
    a("v_lshrrev_b32 v14, 1, v2")
    a("v_and_b32 v8, 1, v2")
    a("v_lshl_add_u32 v14, v8, 3, v14")
    a("s_cmp_lg_u32 s3, 0")
    a("s_cbranch_scc1 L_B2_nostat")
    a("v_lshlrev_b32 v8, 3, v14")
    a("s_lshl_b32 s10, s9, 7")
    a(f"s_add_u32 s10, s10, {g.B_STAT}")
    a("s_mov_b64 exec, 0xffff")
    a("buffer_store_dwordx2 v[12:13], v8, s[56:59], s10 offen sc1")
    a("s_mov_b64 exec, -1")
    a("L_B2_nostat:")
    g.stamp(16)
    AC = 32
    DT = [64, 72, 80, 88]
    XY = [96, 100, 104, 108]
    groups = [(T, j2, sel) for T in range(8) for j2 in range(2) for sel in range(2)]
    NG = len(groups)
    def st1(n):
        T, j2, sel = groups[n]
        d = DT[n % 4]
        for uu in range(2):
            a(f"v_mfma_f32_16x16x32_bf16 {vr(d+4*uu)}, {vr(CK+((2*T+uu)*2+j2)*4)}, {vr(ID+4*sel)}, 0")
    def st2(n):
        d = DT[n % 4]; x = XY[n % 4]
        a(f"v_cvt_pk_bf16_f32 v{x}, v{d}, v{d+1}")
        a(f"v_cvt_pk_bf16_f32 v{x+1}, v{d+2}, v{d+3}")
        a(f"v_cvt_pk_bf16_f32 v{x+2}, v{d+4}, v{d+5}")
        a(f"v_cvt_pk_bf16_f32 v{x+3}, v{d+6}, v{d+7}")
    def st3(n):
        x = XY[n % 4]
        a(f"v_permlane32_swap_b32 v{x}, v{x+2}")
        a(f"v_permlane32_swap_b32 v{x+1}, v{x+3}")
    def st4(n):
        T, j2, sel = groups[n]
        x = XY[n % 4]
        for k in range(2):
            ac = AC + 4 * (j2*4 + 2*k + sel)
            c = "0" if T == 0 else vr(ac)
            a(f"v_mfma_f32_16x16x16_bf16 {vr(ac)}, {vr(x+2*k,2)}, {vr(PP+2*T,2)}, {c}")
    for n in range(NG + 4):
        if n < NG:
            st1(n)
        else:
            a("s_nop 1")
        if 0 <= n - 4 < NG:
            st4(n - 4)
        else:
            a("s_nop 1")
        if 0 <= n - 3 < NG:
            st3(n - 3)
        else:
            a("s_nop 1")
        if 0 <= n - 2 < NG:
            st2(n - 2)
        else:
            a("s_nop 3")
    a("s_nop 7")
    a("s_nop 7")
    g.stamp(17)
    for ai in range(8):
        a(f"v_cvt_pk_bf16_f32 v{64+2*ai}, v{AC+4*ai}, v{AC+4*ai+1}")
        a(f"v_cvt_pk_bf16_f32 v{65+2*ai}, v{AC+4*ai+2}, v{AC+4*ai+3}")
    a("v_lshlrev_b32 v8, 6, v14")
    a("v_and_b32 v9, 1, v3")
    a("v_lshl_add_u32 v8, v9, 5, v8")
    a("v_lshrrev_b32 v9, 1, v3")
    a("v_lshl_add_u32 v8, v9, 4, v8")
    for m in range(4):
        a(f"v_permlane16_swap_b32 v{64+4*m}, v{66+4*m}")
        a(f"v_permlane16_swap_b32 v{65+4*m}, v{67+4*m}")
    a("s_lshl_b32 s10, s9, 15")
    a("s_lshl_b32 s11, s3, 12")
    a("s_add_u32 s10, s10, s11")
    a(f"s_add_u32 s10, s10, {g.B_PART}")
    for m in range(4):
        a(f"buffer_store_dwordx4 {vr(64+4*m)}, v8, s[56:59], s10 offen offset:{m*1024} sc1")
    g.stamp(3)
    signal(192, "p", 0)
    a("s_lshl_b32 s11, s3, 13")
    for i in range(8):
        a("s_mov_b32 m0, s11")
        a("s_nop 0")
        a("buffer_load_dwordx4 v4, s[48:51], s98 offen nt lds")
        if i < 7:
            a("s_add_u32 s98, s98, 0x4000")
            a("s_add_u32 s11, s11, 0x400")
    poll(192, 64, "p")
    g.stamp(4)
    a("v_lshlrev_b32 v8, 7, v1")
    a("s_lshl_b32 s10, s4, 3")
    a(f"s_add_u32 s10, s10, {g.B_STAT}")
    a("buffer_load_dwordx2 v[12:13], v8, s[56:59], s10 offen sc1")
    a("v_lshrrev_b32 v10, 2, v1")
    a("v_lshlrev_b32 v8, 15, v10")
    a("v_and_b32 v9, 3, v1")
    a("v_lshl_add_u32 v8, v9, 4, v8")
    a("s_lshl_b32 s10, s14, 3")
    a("s_add_u32 s10, s10, s3")
    a("s_lshl_b32 s10, s10, 10")
    a("s_lshl_b32 s11, s4, 6")
    a("s_add_u32 s10, s10, s11")
    a(f"s_add_u32 s10, s10, {g.B_PART}")
    for i in range(4):
        a(f"buffer_load_dwordx4 {vr(32+4*i)}, v8, s[56:59], s10 offen sc1")
        if i < 3:
            a("s_add_u32 s10, s10, 0x80000")
    a("s_waitcnt vmcnt(4)")
    def allred32(op, reg, tmp):
        for r in (1, 2, 4, 8):
            a("s_nop 1")
            a(f"{op}_dpp v{reg}, v{reg}, v{reg} row_ror:{r} row_mask:0xf bank_mask:0xf")
        a(f"v_mov_b32 v{tmp}, v{reg}")
        a("s_nop 1")
        a(f"v_permlane16_swap_b32 v{reg}, v{tmp}")
        a("s_nop 1")
        a(f"{op} v{reg}, v{reg}, v{tmp}")
    a("v_mov_b32 v14, v12")
    allred32("v_max_f32", 14, 8)
    a("v_sub_f32 v12, v12, v14")
    a("v_mul_f32 v12, s15, v12")
    a("v_exp_f32 v12, v12")
    a("s_nop 0")
    a("v_mul_f32 v13, v12, v13")
    allred32("v_add_f32", 13, 8)
    a("v_rcp_f32 v14, v13")
    a("s_nop 0")
    a("v_fma_f32 v15, -v13, v14, 1.0")
    a("v_fmac_f32 v14, v15, v14")
    a("v_mul_f32 v12, v12, v14")
    a("v_lshlrev_b32 v10, 2, v10")
    for i in range(4):
        a(f"v_add_u32 v8, {i*64}, v10")
        a(f"ds_bpermute_b32 v{64+i}, v8, v12")
    a("s_waitcnt vmcnt(0) lgkmcnt(0)")
    a("s_lshl_b32 s11, s3, 13")
    a("v_lshlrev_b32 v11, 4, v1")
    a("v_add_u32 v11, s11, v11")
    a("v_add_u32 v15, 0x10000, v11")
    for i in range(16):
        a(f"ds_read_b128 {vr(128+4*i)}, {'v15' if i < 8 else 'v11'} offset:{(i%8)*1024}")
    for b in range(2):
        for ii in range(2):
            i = 2*b + ii
            for k in range(4):
                a(f"v_lshlrev_b32 v8, 16, v{32+4*i+k}")
                a(f"v_and_b32 v14, 0xffff0000, v{32+4*i+k}")
                if ii == 0:
                    a(f"v_mul_f32 v{72+8*b+2*k}, v{64+i}, v8")
                    a(f"v_mul_f32 v{73+8*b+2*k}, v{64+i}, v14")
                else:
                    a(f"v_fmac_f32 v{72+8*b+2*k}, v{64+i}, v8")
                    a(f"v_fmac_f32 v{73+8*b+2*k}, v{64+i}, v14")
    a("s_nop 1")
    for k in range(16):
        a(f"v_add_f32_dpp v{72+k}, v{72+k}, v{72+k} row_ror:4 row_mask:0xf bank_mask:0xf")
    g.red8(72, 16, 88)
    a("s_lshl_b32 s10, s3, 8")
    a(f"s_add_u32 s10, s10, {LB_CL}")
    a("v_lshlrev_b32 v8, 5, v9")
    a("v_add_u32 v8, s10, v8")
    a("s_mov_b64 exec, 0xf")
    for b in range(2):
        a(f"ds_write_b128 v8, {vr(72+8*b)} offset:{b*128}")
        a(f"ds_write_b128 v8, {vr(76+8*b)} offset:{b*128+16}")
    a("s_mov_b64 exec, -1")
    a("v_lshlrev_b32 v8, 2, v7")
    a("v_add_u32 v8, s10, v8")
    a("s_waitcnt lgkmcnt(0)")
    for b in range(2):
        for i in range(16):
            a(f"ds_read_b32 v{32+16*b+i}, v8 offset:{b*128 + i*8}")
    for k in range(16):
        a(f"v_mov_b32 v{96+k}, 0")
    a("s_waitcnt lgkmcnt(0)")
    for i in range(16):
        for w in range(4):
            a(f"v_lshlrev_b32 v8, 16, v{128+4*i+w}")
            a(f"v_and_b32 v9, 0xffff0000, v{128+4*i+w}")
            for b in range(2):
                a(f"v_fmac_f32 v{96+8*b+2*w}, v8, v{32+16*b+i}")
                a(f"v_fmac_f32 v{96+8*b+2*w+1}, v9, v{32+16*b+i}")
    a("v_lshlrev_b32 v8, 10, v7")
    a("v_and_b32 v9, 31, v1")
    a("v_lshl_add_u32 v8, v9, 5, v8")
    a("v_add_u32 v8, s11, v8")
    for b in range(2):
        a(f"ds_write_b128 v8, {vr(96+8*b)} offset:{b*2048}")
        a(f"ds_write_b128 v8, {vr(100+8*b)} offset:{b*2048+16}")
    a("s_waitcnt lgkmcnt(0)")
    a("s_barrier")
    a("v_and_b32 v8, 255, v0")
    a("v_lshlrev_b32 v8, 2, v8")
    a("v_lshrrev_b32 v9, 8, v0")
    a("v_lshl_add_u32 v8, v9, 11, v8")
    for w in range(8):
        for hf in range(2):
            a(f"ds_read_b32 v{32+2*w+hf}, v8 offset:{w*8192 + hf*1024}")
    a("s_waitcnt lgkmcnt(0)")
    for st in (8, 4, 2, 1):
        for i in range(st):
            a(f"v_add_f32 v{32+i}, v{32+i}, v{32+i+st}")
    a("s_lshl_b32 s10, s9, 11")
    a(f"s_add_u32 s10, s10, {g.CTX_P}")
    a("v_lshlrev_b32 v8, 2, v0")
    a("buffer_store_dword v32, v8, s[56:59], s10 offen sc1")
    g.stamp(5)
    signal(448, "c", 0)
    FW = 192
    g.load_kernargs()
    a("s_and_b32 s5, s9, 1")
    a("s_lshr_b32 s6, s9, 3")
    a("s_bfe_u32 s7, s9, 0x20001")
    a("s_movk_i32 s10, 4682")
    a("v_mul_lo_u32 v5, v1, s10")
    a("v_lshrrev_b32 v5, 16, v5")
    a("v_mul_u32_u24 v6, 14, v5")
    a("v_sub_u32 v6, v1, v6")
    a("v_mul_u32_u24 v8, 896, v5")
    a("v_lshl_add_u32 v8, v6, 4, v8")
    a("s_lshl_b32 s10, s6, 9")
    a("s_lshl_b32 s11, s3, 6")
    a("s_add_u32 s10, s10, s11")
    a("s_mul_i32 s10, s10, 896")
    a("s_mul_i32 s11, s7, 224")
    a("s_add_u32 s10, s10, s11")
    a("s_waitcnt lgkmcnt(0)")
    a("s_cmp_eq_u32 s5, 1")
    a(f"s_cselect_b32 s44, s{g.P_BWO}, s{g.P_WO}")
    a(f"s_cselect_b32 s45, s{g.P_BWO+1}, s{g.P_WO+1}")
    a(f"s_mov_b32 s46, {4096*896:#x}")
    a("s_mov_b32 s47, 0x20000")
    srd(52, g.P_OUT, g.P_OUT+1, 1792*2)
    def fw_loads():
        a("s_mov_b32 exec_hi, 0x00ffffff")
        for i in range(16):
            a(f"buffer_load_dwordx4 {vr(FW+4*i)}, v8, s[44:47], s10 offen nt")
            if i < 15:
                a(f"s_add_u32 s10, s10, {4*896}")
        a("s_mov_b64 exec, -1")
    fw_loads()
    LF_O = 65536
    LF_R = 69632
    a("s_cmp_eq_u32 s5, 1")
    a("s_cbranch_scc1 L_F1_B")
    a("s_cmp_lg_u32 s3, 0")
    a("s_cbranch_scc1 L_F1_Aw")
    a("v_cmp_le_u32 vcc, 12, v1")
    a("v_mov_b32 v8, 84")
    a("s_nop 1")
    a("v_cndmask_b32 v8, 0, v8, vcc")
    a("v_add_u32 v8, v8, v1")
    a("v_lshlrev_b32 v9, 7, v8")
    a("s_mul_i32 s10, s6, 12*128")
    a(f"s_add_u32 s10, s10, {g.FLAGS + 256*128:#x}")
    a("s_mov_b32 s11, 0")
    a("s_mov_b64 exec, 0xffffff")
    a("L_pl_fa:")
    a("buffer_load_dwordx2 v[10:11], v9, s[56:59], s10 offen sc1")
    a("s_waitcnt vmcnt(0)")
    a("v_cmp_ne_u64 vcc, s[94:95], v[10:11]")
    a("s_cmp_eq_u64 vcc, 0")
    a("s_cbranch_scc1 L_pd_fa")
    a(f"s_sleep {g.SLPF}")
    a("s_add_u32 s11, s11, 1")
    a("s_cmp_lt_u32 s11, 0x40000")
    a("s_cbranch_scc1 L_pl_fa")
    a("L_pd_fa:")
    a("s_mov_b64 exec, -1")
    a("L_F1_Aw:")
    a("s_barrier")
    g.stamp(21)
    a("s_lshr_b32 s12, s3, 2")
    a("s_lshl_b32 s10, s6, 1")
    a("s_add_u32 s10, s10, s12")
    a("s_mul_i32 s10, s10, 6")
    a("s_lshl_b32 s11, s10, 10")
    a(f"s_add_u32 s11, s11, {g.A_PART}")
    a("s_lshl_b32 s12, s10, 3")
    a(f"s_add_u32 s12, s12, {g.A_STAT}")
    a("v_and_b32 v8, 255, v0")
    a("v_lshlrev_b32 v8, 2, v8")
    a("v_mov_b32 v9, 0")
    for b in range(2):
        for sp in range(6):
            a(f"s_add_u32 s13, s11, {b*96*1024 + sp*1024}")
            a(f"buffer_load_dword v{64+b*6+sp}, v8, s[56:59], s13 offen sc1")
        a(f"s_add_u32 s13, s12, {b*96*8}")
        for k in range(3):
            a(f"buffer_load_dwordx4 {vr(80+b*12+4*k)}, v9, s[56:59], s13 offen offset:{16*k} sc1")
    a("s_waitcnt vmcnt(0)")
    for b in range(2):
        st = 80 + b*12
        a(f"v_max_f32 v8, v{st}, v{st+2}")
        a(f"v_max3_f32 v8, v8, v{st+4}, v{st+6}")
        a(f"v_max3_f32 v8, v8, v{st+8}, v{st+10}")
        for sp in range(6):
            a(f"v_sub_f32 v{st+2*sp}, v{st+2*sp}, v8")
            a(f"v_mul_f32 v{st+2*sp}, s15, v{st+2*sp}")
            a(f"v_exp_f32 v{st+2*sp}, v{st+2*sp}")
        a("s_nop 0")
        a(f"v_mul_f32 v9, v{st}, v{st+1}")
        a(f"v_mul_f32 v{10+b}, v{st}, v{64+b*6}")
        for sp in range(1, 6):
            a(f"v_fmac_f32 v9, v{st+2*sp}, v{st+2*sp+1}")
            a(f"v_fmac_f32 v{10+b}, v{st+2*sp}, v{64+b*6+sp}")
        a("v_rcp_f32 v12, v9")
        a("s_nop 0")
        a("v_fma_f32 v13, -v9, v12, 1.0")
        a("v_fmac_f32 v12, v13, v12")
        a(f"v_mul_f32 v{10+b}, v{10+b}, v12")
    a("s_branch L_F1_j")
    a("L_F1_B:")
    a("s_lshl_b32 s12, s6, 1")
    poll(448, 8, "fb", 12)
    g.stamp(21)
    a("s_lshr_b32 s12, s3, 2")
    a("s_lshl_b32 s10, s6, 1")
    a("s_add_u32 s10, s10, s12")
    a("s_lshl_b32 s11, s10, 13")
    a(f"s_add_u32 s11, s11, {g.CTX_P}")
    a("v_and_b32 v8, 255, v0")
    a("v_lshlrev_b32 v8, 2, v8")
    for qt in range(4):
        a(f"s_add_u32 s13, s11, {qt*2048}")
        for b in range(2):
            a(f"buffer_load_dword v{64+b*4+qt}, v8, s[56:59], s13 offen offset:{b*1024} sc1")
    a("s_waitcnt vmcnt(0)")
    for b in range(2):
        a(f"v_add_f32 v{10+b}, v{64+b*4}, v{65+b*4}")
        a(f"v_add_f32 v12, v{66+b*4}, v{67+b*4}")
        a(f"v_add_f32 v{10+b}, v{10+b}, v12")
    a("L_F1_j:")
    a("v_cvt_pk_bf16_f32 v12, v10, v11")
    a("v_lshlrev_b32 v10, 16, v12")
    a("v_and_b32 v11, 0xffff0000, v12")
    a("v_lshlrev_b32 v8, 3, v0")
    a(f"v_add_u32 v8, {LF_O}, v8")
    a("ds_write_b64 v8, v[10:11]")
    a("s_waitcnt lgkmcnt(0)")
    a("s_barrier")
    a("v_min_u32 v8, 3, v5")
    a("v_lshlrev_b32 v8, 3, v8")
    a("s_lshl_b32 s10, s3, 9")
    a(f"s_add_u32 s10, s10, {LF_O}")
    a("v_add_u32 v8, s10, v8")
    for i in range(16):
        a(f"ds_read_b64 v[{64+2*i}:{65+2*i}], v8 offset:{i*32}")
    for k in range(16):
        a(f"v_mov_b32 v{96+k}, 0")
    a("s_waitcnt lgkmcnt(0)")
    for i in range(16):
        for w in range(4):
            a(f"v_lshlrev_b32 v8, 16, v{FW+4*i+w}")
            a(f"v_and_b32 v9, 0xffff0000, v{FW+4*i+w}")
            for b in range(2):
                a(f"v_fmac_f32 v{96+8*b+2*w}, v8, v{64+2*i+b}")
                a(f"v_fmac_f32 v{96+8*b+2*w+1}, v9, v{64+2*i+b}")
    a("s_mul_i32 s10, s3, 3584")
    a(f"s_add_u32 s10, s10, {LF_R}")
    a("v_lshlrev_b32 v8, 6, v1")
    a("v_add_u32 v8, s10, v8")
    a("s_mov_b32 exec_hi, 0x00ffffff")
    for k in range(4):
        a(f"ds_write_b128 v8, {vr(96+4*k)} offset:{16*k}")
    a("s_mov_b64 exec, -1")
    a("s_waitcnt lgkmcnt(0)")
    a("s_barrier")
    a("s_cmp_ge_u32 s3, 4")
    a("s_cbranch_scc1 L_end")
    a("v_and_b32 v12, 127, v0")
    a("v_lshrrev_b32 v13, 7, v0")
    a("v_lshrrev_b32 v8, 3, v12")
    a("v_lshlrev_b32 v8, 6, v8")
    a("v_lshl_add_u32 v8, v13, 5, v8")
    a("v_and_b32 v9, 7, v12")
    a("v_lshl_add_u32 v8, v9, 2, v8")
    a(f"v_add_u32 v8, {LF_R}, v8")
    for j in range(32):
        a(f"ds_read_b32 v{32+j}, v8 offset:{j*896}")
    a("s_waitcnt lgkmcnt(0)")
    for st in (16, 8, 4, 2, 1):
        for i in range(st):
            a(f"v_add_f32 v{32+i}, v{32+i}, v{32+i+st}")
    a("s_lshl_b32 s12, s5, 2")
    a("s_add_u32 s12, s12, s7")
    a("s_lshl_b32 s10, s12, 3")
    a("s_add_u32 s10, s10, s6")
    a("s_mov_b32 s93, s10")
    a("s_lshl_b32 s10, s10, 10")
    a(f"s_add_u32 s10, s10, {g.OUT_P}")
    a("v_lshlrev_b32 v14, 2, v0")
    a("buffer_store_dword v32, v14, s[56:59], s10 offen sc1")
    a("s_waitcnt vmcnt(0)")
    a("s_barrier")
    g.stamp(22)
    a("s_cmp_lg_u32 s3, 0")
    a("s_cbranch_scc1 L_F2_nf")
    g.set_flag(512, 93)
    a("L_F2_nf:")
    a("s_cmp_lg_u32 s6, 0")
    a("s_cbranch_scc1 L_end")
    a("s_lshl_b32 s12, s5, 2")
    a("s_add_u32 s12, s12, s7")
    a("s_lshl_b32 s12, s12, 1")
    a("s_cmp_lg_u32 s3, 0")
    a("s_cbranch_scc1 L_pw_f2")
    g.poll_loop("f2", 512, 8, 12, g.SLPF)
    a("L_pw_f2:")
    a("s_barrier")
    g.stamp(23)
    a("s_lshl_b32 s10, s93, 10")
    a(f"s_add_u32 s10, s10, {g.OUT_P}")
    for hp in range(8):
        if hp == 4:
            a("s_add_u32 s10, s10, 0x1000")
        a(f"buffer_load_dword v{32+hp}, v14, s[56:59], s10 offen offset:{(hp%4)*1024} sc1")
    a("s_waitcnt vmcnt(0)")
    for st in (4, 2, 1):
        for i in range(st):
            a(f"v_add_f32 v{32+i}, v{32+i}, v{32+i+st}")
    a("v_cvt_pk_bf16_f32 v32, v32, v32")
    a("s_mul_i32 s10, s5, 448")
    a("s_mul_i32 s11, s7, 112")
    a("s_add_u32 s10, s10, s11")
    a("s_lshl_b32 s10, s10, 1")
    a("v_mul_u32_u24 v8, 896, v13")
    a("v_add_u32 v8, v8, v12")
    a("v_lshlrev_b32 v8, 1, v8")
    a("v_cmp_gt_u32 vcc, 112, v12")
    a("s_and_saveexec_b64 s[12:13], vcc")
    a("buffer_store_short v32, v8, s[52:55], s10 offen")
    a("s_branch L_end")
```

```python
import sys

KN = "concat_heads__mha_block_cached__compressed_kv_cla__decode_kernel"
OUT = []
def a(s):
    OUT.append(s)

A_PART = 0x00000
A_STAT = 0x30000
QABS   = 0x40000
B_STAT = 0x60000
CTX_P  = 0x64000
OUT_P  = 0x90000
QV     = 0xB0000
FLAGS  = 0xE0000
STAMP  = 0xC0000
B_PART = 0x100000
WS_SIZE = 0x10000000

C1 = 0x3DB8AA3B
LDS_K1 = 147456

STAMPS = "--stamps" in sys.argv
LOCKSTEP = False
def argval(name, default):
    for x in sys.argv:
        if x.startswith(name + "="):
            return int(x.split("=")[1])
    return default
TA = argval("TA", 44)
TB = (256 - 4 * TA) // 2
assert 4 * TA + 2 * TB == 256
TA0, TAK = TA // 8, TA % 8
TB0, TBK = TB // 8, TB % 8
NOQ = "--noq" in sys.argv
NOB = "--nob" in sys.argv
WQNT = "--wqnt" in sys.argv

def srd(dst, lo, hi, size):
    a(f"s_mov_b32 s{dst}, s{lo}")
    a(f"s_mov_b32 s{dst+1}, s{hi}")
    a(f"s_mov_b32 s{dst+2}, {size:#x}")
    a(f"s_mov_b32 s{dst+3}, 0x20000")

def srd_off(dst, lo, hi, soff, size):
    a(f"s_add_u32 s{dst}, s{lo}, s{soff}")
    a(f"s_addc_u32 s{dst+1}, s{hi}, 0")
    a(f"s_mov_b32 s{dst+2}, {size:#x}")
    a(f"s_mov_b32 s{dst+3}, 0x20000")

def load_kernargs():
    a("s_load_dwordx16 s[16:31], s[0:1], 0")
    a("s_load_dwordx8 s[32:39], s[0:1], 64")
    a("s_load_dwordx4 s[40:43], s[0:1], 96")

P_AX, P_K, P_V, P_WQ, P_WO, P_BX, P_CKV, P_BWQ, P_WUK, P_WUV, P_BWO, P_OUT, P_DBG, P_WS = [16 + 2 * i for i in range(14)]

def vr(b, n=4):
    return f"v[{b}:{b+n-1}]"

LDS_STAMP = 147200
def stamp(idx):
    if not STAMPS:
        return
    lab = f"L_st{len(OUT)}"
    a(f"s_cmp_lg_u32 s3, 0")
    a(f"s_cbranch_scc1 {lab}")
    a("s_memrealtime s[10:11]")
    a("s_waitcnt lgkmcnt(0)")
    a("v_mov_b32 v8, s10")
    a("v_mov_b32 v9, s11")
    a(f"v_mov_b32 v10, {LDS_STAMP + idx*8}")
    a("s_mov_b64 s[10:11], exec")
    a("s_mov_b64 exec, 1")
    a("ds_write_b64 v10, v[8:9]")
    a("s_mov_b64 exec, s[10:11]")
    a("s_waitcnt lgkmcnt(0)")
    a(f"{lab}:")

def stamp_init():
    if not STAMPS:
        return
    a("v_mov_b32 v8, 0")
    a("v_mov_b32 v9, 0")
    a("v_lshlrev_b32 v10, 3, v1")
    a(f"v_add_u32 v10, {LDS_STAMP}, v10")
    a("s_mov_b64 exec, 0xffffffff")
    a("ds_write_b64 v10, v[8:9]")
    a("s_mov_b64 exec, -1")
    a("s_waitcnt lgkmcnt(0)")

def stamp_dump():
    if not STAMPS:
        return
    a("s_mov_b64 exec, -1")
    a("s_cmp_lg_u32 s3, 0")
    a("s_cbranch_scc1 L_exit")
    stamp(31)
    a("v_lshlrev_b32 v10, 3, v1")
    a(f"v_add_u32 v11, {LDS_STAMP}, v10")
    a("s_mov_b64 exec, 0xffffffff")
    a("ds_read_b64 v[8:9], v11")
    a("s_lshl_b32 s12, s2, 8")
    a(f"s_add_u32 s12, s12, {STAMP}")
    a("s_waitcnt lgkmcnt(0)")
    a("buffer_store_dwordx2 v[8:9], v10, s[56:59], s12 offen")

def get_nonce(tag):
    a("v_mov_b32 v9, 0")
    a("s_mov_b32 s11, 0")
    a(f"L_nl_{tag}:")
    a("buffer_load_dwordx2 v[10:11], v9, s[60:63], 0 offen sc1")
    a("s_waitcnt vmcnt(0)")
    a("v_readfirstlane_b32 s94, v10")
    a("v_readfirstlane_b32 s95, v11")
    a("s_cmp_lg_u64 s[94:95], 0")
    a(f"s_cbranch_scc1 L_nd_{tag}")
    a("s_sleep 4")
    a("s_add_u32 s11, s11, 1")
    a("s_cmp_lt_u32 s11, 0x40000")
    a(f"s_cbranch_scc1 L_nl_{tag}")
    a(f"L_nd_{tag}:")

def poll_loop(tag, first, n, offreg, slp):
    a("v_lshlrev_b32 v9, 7, v1")
    a(f"s_mov_b32 s10, {FLAGS + first*128:#x}")
    if offreg is not None:
        a(f"s_lshl_b32 s11, s{offreg}, 9")
        a("s_add_u32 s10, s10, s11")
    a("s_mov_b32 s11, 0")
    if n < 64:
        a(f"s_mov_b64 exec, {(1 << n) - 1:#x}")
    a(f"L_pl_{tag}:")
    a(f"buffer_load_dwordx2 v[10:11], v9, s[56:59], s10 offen sc1")
    a("s_waitcnt vmcnt(0)")
    a("v_cmp_ne_u64 vcc, s[94:95], v[10:11]")
    a("s_cmp_eq_u64 vcc, 0")
    a(f"s_cbranch_scc1 L_pd_{tag}")
    a(f"s_sleep {slp}")
    a("s_add_u32 s11, s11, 1")
    a("s_cmp_lt_u32 s11, 0x40000")
    a(f"s_cbranch_scc1 L_pl_{tag}")
    a(f"L_pd_{tag}:")
    a("s_mov_b64 exec, -1")

def poll(first, n, tag, offreg=None, nonce=False):
    a("s_cmp_lg_u32 s3, 0")
    a(f"s_cbranch_scc1 L_pw_{tag}")
    if nonce:
        get_nonce(tag)
    poll_loop(tag, first, n, offreg, SLP)
    a(f"L_pw_{tag}:")
    a("s_barrier")

def set_flag(first, sreg):
    a("v_mov_b32 v10, s94")
    a("v_mov_b32 v11, s95")
    a(f"s_lshl_b32 s10, s{sreg}, 7")
    a(f"s_add_u32 s10, s10, {FLAGS + first*128:#x}")
    a("v_mov_b32 v9, 0")
    a("s_mov_b64 exec, 1")
    a("buffer_store_dwordx2 v[10:11], v9, s[56:59], s10 offen sc1")
    a("s_mov_b64 exec, -1")

def wave_split(n0, k):
    a("s_sub_u32 s10, s3, 1")
    a("s_max_i32 s10, s10, 0")
    a(f"s_min_u32 s10, s10, {k}")
    a("s_add_u32 s7, s7, s10")
    a("s_sub_u32 s10, s3, 1")
    a(f"s_cmp_lt_u32 s10, {k}")
    a(f"s_cselect_b32 s14, {n0+1}, {n0}")

def s0_task():
    LS_P = 0
    LS_Q = 4096
    load_kernargs()
    a("s_lshr_b32 s10, s13, 6")
    a("s_and_b32 s11, s13, 63")
    a("v_lshrrev_b32 v10, 3, v1")
    a("v_and_b32 v11, 7, v1")
    a("v_lshlrev_b32 v4, 13, v10")
    a("v_lshl_add_u32 v4, v11, 4, v4")
    a("v_lshlrev_b32 v5, 1, v10")
    a("s_waitcnt lgkmcnt(0)")
    a("s_cmp_eq_u32 s10, 1")
    a(f"s_cselect_b32 s44, s{P_BWQ}, s{P_WQ}")
    a(f"s_cselect_b32 s45, s{P_BWQ+1}, s{P_WQ+1}")
    a(f"s_mov_b32 s46, {448*8192:#x}")
    a("s_mov_b32 s47, 0x20000")
    a(f"s_cselect_b32 s48, s{P_BX}, s{P_AX}")
    a(f"s_cselect_b32 s49, s{P_BX+1}, s{P_AX+1}")
    a("s_mov_b32 s50, 1792")
    a("s_mov_b32 s51, 0x20000")
    srd(56, P_WS, P_WS+1, WS_SIZE)
    srd(60, P_DBG, P_DBG+1, 256)
    a(f"s_mul_i32 s12, s3, {56*8192}")
    a("s_lshl_b32 s11, s11, 7")
    a("s_add_u32 s12, s12, s11")
    for i in range(7):
        a(f"buffer_load_dwordx4 {vr(32+4*i)}, v4, s[44:47], s12 offen nt")
        if i < 6:
            a("s_add_u32 s12, s12, 0x10000")
    a("s_mul_i32 s12, s3, 112")
    for i in range(7):
        for b in range(2):
            a(f"buffer_load_ushort v{64+2*i+b}, v5, s[48:51], s12 offen offset:{b*896 + i*16}")
    for k in range(16):
        a(f"v_mov_b32 v{96+k}, 0")
    a("s_waitcnt vmcnt(0)")
    for i in range(7):
        for b in range(2):
            a(f"v_lshlrev_b32 v{8+b}, 16, v{64+2*i+b}")
        for b in range(2):
            for w in range(4):
                a(f"v_dot2_f32_bf16 v{96+8*b+2*w}, v{32+4*i+w}, v{64+2*i+b}, v{96+8*b+2*w}")
                a(f"v_dot2_f32_bf16 v{96+8*b+2*w+1}, v{32+4*i+w}, v{8+b}, v{96+8*b+2*w+1}")
    a("s_nop 2")
    red8(96, 16, 112)
    a("s_lshl_b32 s12, s3, 9")
    a("v_lshlrev_b32 v8, 5, v11")
    a("v_add_u32 v8, s12, v8")
    a("s_mov_b64 exec, 0xff")
    for b in range(2):
        a(f"ds_write_b128 v8, {vr(96+8*b)} offset:{LS_P + b*256}")
        a(f"ds_write_b128 v8, {vr(100+8*b)} offset:{LS_P + b*256 + 16}")
    a("s_mov_b64 exec, -1")
    a("s_waitcnt lgkmcnt(0)")
    a("s_barrier")
    a("s_cmp_lg_u32 s3, 0")
    a("s_cbranch_scc1 L_S0_done")
    a("s_mov_b32 s92, s11")
    get_nonce("s0")
    a("s_mov_b32 s11, s92")
    a("v_lshlrev_b32 v8, 2, v1")
    for w in range(8):
        for b in range(2):
            a(f"ds_read_b32 v{32+8*b+w}, v8 offset:{LS_P + w*512 + b*256}")
    a("s_waitcnt lgkmcnt(0)")
    for st in (4, 2, 1):
        for b in range(2):
            for i in range(st):
                a(f"v_add_f32 v{32+8*b+i}, v{32+8*b+i}, v{32+8*b+i+st}")
    a("v_cvt_pk_bf16_f32 v32, v32, v40")
    a("v_lshlrev_b32 v8, 1, v1")
    a(f"ds_write_b16 v8, v32 offset:{LS_Q}")
    a(f"ds_write_b16_d16_hi v8, v32 offset:{LS_Q+128}")
    a("v_lshlrev_b32 v8, 4, v1")
    a("s_waitcnt lgkmcnt(0)")
    a("s_mov_b64 exec, 0xffff")
    a(f"ds_read_b128 {vr(32)}, v8 offset:{LS_Q}")
    a("s_lshl_b32 s10, s10, 14")
    a("s_add_u32 s10, s10, s11")
    a(f"s_add_u32 s10, s10, {QV}")
    a("s_waitcnt lgkmcnt(0)")
    a(f"buffer_store_dwordx4 {vr(32)}, v4, s[56:59], s10 offen sc1")
    a("s_waitcnt vmcnt(0)")
    set_flag(0, 13)
    stamp(7)
    if STAMPS:
        a("s_waitcnt vmcnt(0)")
        stamp(6)
    a("L_S0_done:")

def red8(base, n, tmp):
    for k in range(n):
        a(f"v_add_f32_dpp v{base+k}, v{base+k}, v{base+k} row_ror:8 row_mask:0xf bank_mask:0xf")
    for k in range(n):
        a(f"v_mov_b32 v{tmp+k}, v{base+k}")
    a("s_nop 1")
    for k in range(n):
        a(f"v_permlane16_swap_b32 v{base+k}, v{tmp+k}")
    a("s_nop 1")
    for k in range(n):
        a(f"v_add_f32 v{base+k}, v{base+k}, v{tmp+k}")
    for k in range(n):
        a(f"v_mov_b32 v{tmp+k}, v{base+k}")
    a("s_nop 1")
    for k in range(n):
        a(f"v_permlane32_swap_b32 v{base+k}, v{tmp+k}")
    a("s_nop 1")
    for k in range(n):
        a(f"v_add_f32 v{base+k}, v{base+k}, v{tmp+k}")

RING = [32, 64, 96]
QOP = 16
ACC = 128
SC = 192
PP = 216
DD = 228
PT = 236
LA_QPART = 0
LA_Q = 16384
LA_OPART = 17408
LA_STAT = 25600

SLPF = argval("SLPF", 4)
SLP = argval("SLP", 24)
SLP0 = argval("SLP0", 100)
SLPA = argval("SLPA", 40)
WIN = argval("WIN", 2)
NR = argval("NR", 6)
WB = argval("WB", 8)
def hbuf(i):
    return 32 + 16 * (i % NR)

def a_half_issue(kind, t, hh, idx):
    base = hbuf(idx)
    if kind == "K":
        a(f"s_add_u32 s10, s7, {t*8192 + hh*4096}")
        for j in range(4):
            a(f"buffer_load_dwordx4 {vr(base+j*4)}, v5, s[48:51], s10 offen offset:{j*128} nt")
    else:
        a(f"s_add_u32 s10, s7, {t*8192}")
        for i in range(4):
            a(f"buffer_load_dwordx4 {vr(base+i*4)}, v6, s[52:55], s10 offen offset:{i*512+hh*256} nt")

def a_unit_head():
    a("L_A_head:")
    stamp(8)
    load_kernargs()
    a("s_lshl_b32 s7, s7, 13")
    a("s_lshl_b32 s8, s5, 4")
    a("s_add_u32 s8, s8, s4")
    a("s_lshl_b32 s9, s8, 21")
    a("v_and_b32 v8, 7, v2")
    a("v_lshlrev_b32 v5, 9, v8")
    a("v_lshrrev_b32 v8, 3, v2")
    a("v_lshl_add_u32 v5, v8, 6, v5")
    a("v_lshl_add_u32 v5, v3, 4, v5")
    a("v_lshlrev_b32 v6, 11, v3")
    a("v_lshl_add_u32 v6, v2, 4, v6")
    a("s_waitcnt lgkmcnt(0)")
    srd_off(48, P_K, P_K+1, 9, 1 << 21)
    srd_off(52, P_V, P_V+1, 9, 1 << 21)
    srd(56, P_WS, P_WS+1, WS_SIZE)
    srd(60, P_DBG, P_DBG+1, 256)
    a("s_mov_b32 s100, 0x05040100")
    a("s_mov_b32 s101, 0x07060302")
    a(f"s_mov_b32 s15, {C1:#x}")
    a("s_cmp_lg_u32 s3, 0")
    a("s_cbranch_scc1 L_A_pf")
    a("s_cmp_lt_u32 s6, 4")
    a("s_cbranch_scc0 L_ns_qa")
    a(f"s_sleep {SLP0}")
    a("L_ns_qa:")
    poll_loop("qa", 0, 4, 4, SLPA)
    a("v_lshlrev_b32 v8, 4, v1")
    a("s_lshl_b32 s10, s5, 13")
    a("s_lshl_b32 s11, s4, 9")
    a("s_add_u32 s10, s10, s11")
    a(f"s_add_u32 s10, s10, {QV}")
    a("s_mov_b64 exec, 0xffffffff")
    a(f"buffer_load_dwordx4 {vr(QOP)}, v8, s[56:59], s10 offen sc1")
    a("s_waitcnt vmcnt(0)")
    a(f"ds_write_b128 v8, {vr(QOP)} offset:{LA_Q}")
    a("s_mov_b64 exec, -1")
    a("s_waitcnt lgkmcnt(0)")
    stamp(9)
    a("s_barrier")
    a("L_A_pf:")
    for i in range(NR):
        if i >= WIN:
            a(f"s_waitcnt vmcnt({4*(WIN-1)})")
        a_half_issue("K", i // 2, i % 2, i)
    a("s_cmp_eq_u32 s3, 0")
    a("s_cbranch_scc1 L_A_nb")
    a("s_barrier")
    a("L_A_nb:")
    a("v_and_b32 v8, 1, v2")
    a("v_lshlrev_b32 v8, 6, v8")
    a("v_lshl_add_u32 v8, v3, 4, v8")
    for j in range(4):
        a(f"ds_read_b128 {vr(QOP+4*j)}, v8 offset:{LA_Q + j*128}")
    a("s_waitcnt lgkmcnt(0)")
    stamp(10)

def cross_g(op, reg, tmp):
    a(f"v_mov_b32 v{tmp}, v{reg}")
    a("s_nop 1")
    a(f"v_permlane32_swap_b32 v{reg}, v{tmp}")
    a("s_nop 1")
    a(f"{op} v{reg}, v{reg}, v{tmp}")
    a(f"v_mov_b32 v{tmp}, v{reg}")
    a("s_nop 1")
    a(f"v_permlane16_swap_b32 v{reg}, v{tmp}")
    a("s_nop 1")
    a(f"{op} v{reg}, v{reg}, v{tmp}")

def a_unit_body(n):
    seq = [("K", t, hh) for t in range(n) for hh in range(2)] + [("V", t, hh) for t in range(n) for hh in range(2)]
    N = len(seq)
    for idx, (kind, t, hh) in enumerate(seq):
        base = hbuf(idx)
        if idx + NR < N:
            a(f"s_waitcnt vmcnt({4*(WIN-1)})")
        else:
            a(f"s_waitcnt vmcnt({4*min(WIN-1, N-1-idx)})")
        if kind == "K":
            u = hh
            for j in range(4):
                c = "0" if j == 0 else vr(DD+4*u)
                a(f"v_mfma_f32_16x16x32_bf16 {vr(DD+4*u)}, {vr(base+j*4)}, {vr(QOP+4*j)}, {c}")
            if idx + NR < N:
                a_half_issue(*seq[idx+NR], idx + NR)
            if u == 0:
                continue
            a("s_nop 7")
            a("s_nop 1")
            for i in range(4):
                a(f"v_permlane32_swap_b32 v{DD+i}, v{DD+4+i}")
            a("s_nop 0")
            for i in range(4):
                a(f"v_add_f32_dpp v{SC+4*t+i}, v{DD+4+i}, v{DD+i} quad_perm:[1,0,3,2] row_mask:0xf bank_mask:0xf")
            a(f"v_cvt_pk_bf16_f32 v8, v{SC+4*t}, v{SC+4*t+1}")
            a(f"v_cvt_pk_bf16_f32 v9, v{SC+4*t+2}, v{SC+4*t+3}")
            a(f"v_lshlrev_b32 v{SC+4*t}, 16, v8")
            a(f"v_and_b32 v{SC+4*t+1}, 0xffff0000, v8")
            a(f"v_lshlrev_b32 v{SC+4*t+2}, 16, v9")
            a(f"v_and_b32 v{SC+4*t+3}, 0xffff0000, v9")
            if t == n - 1:
                ns = 4 * n
                a(f"v_max_f32 v12, v{SC}, v{SC+1}")
                for k in range(2, ns, 2):
                    a(f"v_max3_f32 v12, v12, v{SC+k}, v{SC+k+1}")
                cross_g("v_max_f32", 12, 8)
                a("v_mul_f32 v9, s15, v12")
                for k in range(ns):
                    a(f"v_fma_f32 v{SC+k}, v{SC+k}, s15, -v9")
                for k in range(ns):
                    a(f"v_exp_f32 v{SC+k}, v{SC+k}")
                a("s_nop 0")
                a(f"v_add_f32 v13, v{SC}, v{SC+1}")
                for k in range(2, ns):
                    a(f"v_add_f32 v13, v13, v{SC+k}")
                for k in range(0, ns, 2):
                    a(f"v_cvt_pk_bf16_f32 v{PP+k//2}, v{SC+k}, v{SC+k+1}")
                cross_g("v_add_f32", 13, 8)
                stamp(11)
        else:
            hf = hh
            def mf(pw, pT):
                for e in range(2):
                    ac = ACC + 4 * (hf*8 + 2*pw + e)
                    c = "0" if t == 0 else vr(ac)
                    a(f"v_mfma_f32_16x16x16_bf16 {vr(ac)}, {vr(PP+2*t,2)}, {vr(pT+2*e,2)}, {c}")
            for w in range(4):
                R = [base + i*4 + w for i in range(4)]
                T = PT + 4 * w
                a(f"v_perm_b32 v{T}, v{R[1]}, v{R[0]}, s100")
                a(f"v_perm_b32 v{T+1}, v{R[3]}, v{R[2]}, s100")
                a(f"v_perm_b32 v{T+2}, v{R[1]}, v{R[0]}, s101")
                a(f"v_perm_b32 v{T+3}, v{R[3]}, v{R[2]}, s101")
                if w >= 1:
                    mf(w - 1, PT + 4 * (w - 1))
            a("s_nop 1")
            mf(3, PT + 12)
            if idx + NR < N:
                a_half_issue(*seq[idx+NR], idx + NR)
    a("s_branch L_A_tail")

def a_unit_tail():
    a("L_A_tail:")
    stamp(12)
    a("s_nop 7")
    a("s_nop 7")
    for k in range(16):
        a(f"v_mov_b32 v{32+k}, v{ACC+4*k}")
    a("s_lshl_b32 s10, s3, 10")
    a("v_lshlrev_b32 v8, 5, v2")
    a("v_add_u32 v8, s10, v8")
    a("s_lshl_b32 s11, s3, 3")
    a("v_mov_b32 v9, s11")
    a("s_mov_b64 exec, 0xffff")
    a(f"ds_write_b128 v8, {vr(32)} offset:{LA_OPART}")
    a(f"ds_write_b128 v8, {vr(36)} offset:{LA_OPART+16}")
    a(f"ds_write_b128 v8, {vr(40)} offset:{LA_OPART+512}")
    a(f"ds_write_b128 v8, {vr(44)} offset:{LA_OPART+528}")
    a("s_mov_b64 exec, 1")
    a(f"ds_write_b64 v9, v[12:13] offset:{LA_STAT}")
    a("s_mov_b64 exec, -1")
    a("s_waitcnt lgkmcnt(0)")
    a("s_barrier")
    a("s_cmp_ge_u32 s3, 4")
    a("s_cbranch_scc1 L_end")
    a("v_mov_b32 v8, 0")
    for k in range(4):
        a(f"ds_read_b128 {vr(32+4*k)}, v8 offset:{LA_STAT+16*k}")
    a("v_lshlrev_b32 v9, 2, v0")
    for w in range(8):
        a(f"ds_read_b32 v{48+w}, v9 offset:{LA_OPART+1024*w}")
    a("s_waitcnt lgkmcnt(0)")
    a("v_max_f32 v12, v32, v34")
    a("v_max3_f32 v12, v12, v36, v38")
    a("v_max3_f32 v12, v12, v40, v42")
    a("v_max3_f32 v12, v12, v44, v46")
    for w in range(8):
        a(f"v_sub_f32 v{32+2*w}, v{32+2*w}, v12")
        a(f"v_mul_f32 v{32+2*w}, s15, v{32+2*w}")
        a(f"v_exp_f32 v{32+2*w}, v{32+2*w}")
    a("s_nop 0")
    a("v_mul_f32 v13, v32, v33")
    a("v_mul_f32 v14, v32, v48")
    for w in range(1, 8):
        a(f"v_fmac_f32 v13, v{32+2*w}, v{33+2*w}")
        a(f"v_fmac_f32 v14, v{32+2*w}, v{48+w}")
    a("s_mul_i32 s10, s8, 6")
    a("s_add_u32 s10, s10, s6")
    a("s_lshl_b32 s11, s10, 10")
    a(f"s_add_u32 s11, s11, {A_PART}")
    a("buffer_store_dword v14, v9, s[56:59], s11 offen sc1")
    a("s_cmp_lg_u32 s3, 0")
    a("s_cbranch_scc1 L_A_ns")
    a("s_lshl_b32 s11, s10, 3")
    a(f"s_add_u32 s11, s11, {A_STAT}")
    a("s_mov_b64 exec, 1")
    a("buffer_store_dwordx2 v[12:13], v8, s[56:59], s11 offen sc1")
    a("s_mov_b64 exec, -1")
    a("L_A_ns:")
    a("s_mov_b32 s93, s10")
    a("s_waitcnt vmcnt(0)")
    a("s_barrier")
    a("s_cmp_lg_u32 s3, 0")
    a("s_cbranch_scc1 L_end")
    set_flag(256, 93)
    a("s_branch L_end")

def main_kernel():
    a(f".globl {KN}\n.p2align 8\n.type {KN},@function\n{KN}:")
    a("s_cmp_ge_u32 s2, 256")
    a("s_cbranch_scc1 L_exit")
    a("v_lshrrev_b32 v8, 6, v0")
    a("v_and_b32 v1, 63, v0")
    a("v_readfirstlane_b32 s3, v8")
    a("v_and_b32 v2, 15, v1")
    a("v_lshrrev_b32 v3, 4, v1")
    stamp_init()
    a("s_and_b32 s8, s2, 7")
    a("s_lshr_b32 s9, s2, 3")
    a("s_cmp_lt_u32 s9, 8")
    a("s_cbranch_scc1 L_B1")
    a("s_cmp_lt_u32 s9, 16")
    a("s_cbranch_scc1 L_B2")
    a("s_sub_u32 s9, s9, 16")
    a("s_lshl_b32 s13, s9, 3")
    a("s_add_u32 s13, s13, s8")
    a("s_lshr_b32 s4, s9, 3")
    a("s_lshl_b32 s10, s8, 1")
    a("s_add_u32 s4, s4, s10")
    a("s_lshr_b32 s5, s9, 2")
    a("s_and_b32 s5, s5, 1")
    a("s_and_b32 s6, s9, 3")
    a(f"s_mul_i32 s7, s6, {TA0*8+TAK}")
    a(f"s_mul_i32 s10, s3, {TA0}")
    a("s_add_u32 s7, s7, s10")
    wave_split(TA0, TAK)
    s0_task()
    a_unit_head()
    ns = sorted(set([TA0, TB0] + ([TA0+1] if TAK else []) + ([TB0+1] if TBK else [])))
    for n in ns[:-1]:
        a(f"s_cmp_eq_u32 s14, {n}")
        a(f"s_cbranch_scc1 L_A{n}")
    a_unit_body(ns[-1])
    for n in ns[:-1]:
        a(f"L_A{n}:")
        a_unit_body(n)
    a_unit_tail()
    import gen_b
    gen_b.emit(sys.modules[__name__])
    a("L_end:")
    stamp_dump()
    a("L_exit:")
    a("s_endpgm")

def kd(name, vgpr, sgpr=102):
    a(f""".amdhsa_kernel {name}
  .amdhsa_next_free_vgpr {vgpr}
  .amdhsa_next_free_sgpr {sgpr}
  .amdhsa_accum_offset {(vgpr+3)//4*4}
  .amdhsa_group_segment_fixed_size 0
  .amdhsa_kernarg_size 112
  .amdhsa_user_sgpr_count 2
  .amdhsa_user_sgpr_kernarg_segment_ptr 1
  .amdhsa_system_sgpr_workgroup_id_x 1
.end_amdhsa_kernel""")

L2_O = 0
L2_RED = 2048
L2_FLAG = 18432
LDS_K2 = 18688

def final_kernel():
    a(".globl k2_kernel\n.p2align 8\n.type k2_kernel,@function\nk2_kernel:")
    a("s_cmp_ge_u32 s2, 224")
    a("s_cbranch_scc1 L2_exit")
    if STAMPS:
        a("s_memrealtime s[64:65]")
    load_kernargs()
    a("v_lshrrev_b32 v8, 6, v0")
    a("v_and_b32 v1, 63, v0")
    a("v_readfirstlane_b32 s3, v8")
    a("s_and_b32 s4, s2, 15")
    a("s_lshr_b32 s5, s2, 4")
    a("s_cmp_ge_u32 s5, 7")
    a("s_cselect_b32 s6, 1, 0")
    a("s_mul_i32 s7, s6, 7")
    a("s_sub_u32 s7, s5, s7")
    a(f"s_mov_b32 s15, {C1:#x}")
    a("s_waitcnt lgkmcnt(0)")
    a("s_cmp_eq_u32 s6, 1")
    a(f"s_cselect_b32 s44, s{P_BWO}, s{P_WO}")
    a(f"s_cselect_b32 s45, s{P_BWO+1}, s{P_WO+1}")
    a(f"s_mov_b32 s46, {4096*896:#x}")
    a("s_mov_b32 s47, 0x20000")
    srd(56, P_WS, P_WS+1, WS_SIZE)
    srd(60, P_DBG, P_DBG+1, 256)
    srd(48, P_OUT, P_OUT+1, 1792*2)
    a("v_lshrrev_b32 v2, 3, v1")
    a("v_and_b32 v3, 7, v1")
    a("s_movk_i32 s10, 896")
    a("v_mul_lo_u32 v4, v2, s10")
    a("v_lshl_add_u32 v4, v3, 4, v4")
    a("s_lshl_b32 s10, s4, 8")
    a("s_lshl_b32 s11, s3, 6")
    a("s_add_u32 s10, s10, s11")
    a("s_mul_i32 s10, s10, 896")
    a("s_lshl_b32 s11, s7, 7")
    a("s_add_u32 s10, s10, s11")
    for i in range(8):
        a(f"buffer_load_dwordx4 {vr(32+4*i)}, v4, s[44:47], s10 offen nt")
        if i < 7:
            a(f"s_add_u32 s10, s10, {8*896}")
    a("v_lshlrev_b32 v5, 2, v0")
    a("s_cmp_eq_u32 s6, 1")
    a("s_cbranch_scc1 L2_B")
    a("s_mul_i32 s10, s4, 6")
    a("s_lshl_b32 s11, s10, 10")
    a(f"s_add_u32 s11, s11, {A_PART}")
    a("s_lshl_b32 s12, s10, 3")
    a(f"s_add_u32 s12, s12, {A_STAT}")
    a("v_mov_b32 v6, 0")
    for b in range(2):
        for s in range(6):
            a(f"s_add_u32 s13, s11, {b*96*1024 + s*1024}")
            a(f"buffer_load_dword v{64+b*6+s}, v5, s[56:59], s13 offen")
        a(f"s_add_u32 s13, s12, {b*96*8}")
        for k in range(3):
            a(f"buffer_load_dwordx4 {vr(80+b*12+4*k)}, v6, s[56:59], s13 offen offset:{16*k}")
    a("s_waitcnt vmcnt(0)")
    for b in range(2):
        st = 80 + b*12
        a(f"v_max_f32 v8, v{st}, v{st+2}")
        a(f"v_max3_f32 v8, v8, v{st+4}, v{st+6}")
        a(f"v_max3_f32 v8, v8, v{st+8}, v{st+10}")
        for s in range(6):
            a(f"v_sub_f32 v{st+2*s}, v{st+2*s}, v8")
            a(f"v_mul_f32 v{st+2*s}, s15, v{st+2*s}")
            a(f"v_exp_f32 v{st+2*s}, v{st+2*s}")
        a("s_nop 0")
        a(f"v_mul_f32 v9, v{st}, v{st+1}")
        a(f"v_mul_f32 v{10+b}, v{st}, v{64+b*6}")
        for s in range(1, 6):
            a(f"v_fmac_f32 v9, v{st+2*s}, v{st+2*s+1}")
            a(f"v_fmac_f32 v{10+b}, v{st+2*s}, v{64+b*6+s}")
        a("v_rcp_f32 v12, v9")
        a("s_nop 0")
        a("v_fma_f32 v13, -v9, v12, 1.0")
        a("v_fmac_f32 v12, v13, v12")
        a(f"v_mul_f32 v{10+b}, v{10+b}, v12")
    a("s_branch L2_join")
    a("L2_B:")
    a("s_lshl_b32 s11, s4, 13")
    a(f"s_add_u32 s11, s11, {CTX_P}")
    for qt in range(4):
        a(f"s_add_u32 s13, s11, {qt*2048}")
        for b in range(2):
            a(f"buffer_load_dword v{64+b*4+qt}, v5, s[56:59], s13 offen offset:{b*1024}")
    a("s_waitcnt vmcnt(0)")
    for b in range(2):
        a(f"v_add_f32 v{10+b}, v{64+b*4}, v{65+b*4}")
        a(f"v_add_f32 v12, v{66+b*4}, v{67+b*4}")
        a(f"v_add_f32 v{10+b}, v{10+b}, v12")
    a("L2_join:")
    if STAMPS:
        a("s_memrealtime s[66:67]")
    a("v_cvt_pk_bf16_f32 v12, v10, v11")
    a("v_lshlrev_b32 v10, 16, v12")
    a("v_and_b32 v11, 0xffff0000, v12")
    a("v_lshlrev_b32 v8, 3, v0")
    a(f"ds_write_b64 v8, v[10:11] offset:{L2_O}")
    a("s_waitcnt lgkmcnt(0)")
    a("s_barrier")
    a("s_lshl_b32 s10, s3, 9")
    a("v_lshlrev_b32 v8, 3, v2")
    a("v_add_u32 v8, s10, v8")
    for i in range(8):
        a(f"ds_read_b64 v[{64+2*i}:{65+2*i}], v8 offset:{L2_O + i*64}")
    for k in range(16):
        a(f"v_mov_b32 v{96+k}, 0")
    a("s_waitcnt lgkmcnt(0)")
    for i in range(8):
        for w in range(4):
            a(f"v_lshlrev_b32 v8, 16, v{32+4*i+w}")
            a(f"v_and_b32 v9, 0xffff0000, v{32+4*i+w}")
            for b in range(2):
                a(f"v_fmac_f32 v{96+8*b+2*w}, v8, v{64+2*i+b}")
                a(f"v_fmac_f32 v{96+8*b+2*w+1}, v9, v{64+2*i+b}")
    a("v_lshlrev_b32 v8, 6, v0")
    for k in range(4):
        a(f"ds_write_b128 v8, {vr(96+4*k)} offset:{L2_RED+16*k}")
    a("s_waitcnt lgkmcnt(0)")
    a("s_barrier")
    a("s_cmp_ge_u32 s3, 2")
    a("s_cbranch_scc1 L2_wait")
    a("v_lshrrev_b32 v8, 3, v1")
    a("v_lshlrev_b32 v8, 6, v8")
    a("v_lshl_add_u32 v8, v3, 2, v8")
    a("s_lshl_b32 s10, s3, 5")
    a("v_add_u32 v8, s10, v8")
    for j in range(32):
        a(f"ds_read_b32 v{32+j}, v8 offset:{L2_RED + j*512}")
    a("s_waitcnt lgkmcnt(0)")
    for st in (16, 8, 4, 2, 1):
        for i in range(st):
            a(f"v_add_f32 v{32+i}, v{32+i}, v{32+i+st}")
    a("s_lshl_b32 s10, s5, 4")
    a("s_add_u32 s10, s10, s4")
    a("s_lshl_b32 s10, s10, 9")
    a(f"s_add_u32 s10, s10, {OUT_P}")
    a("buffer_store_dword v32, v5, s[56:59], s10 offen sc1")
    a("s_waitcnt vmcnt(0)")
    a("L2_wait:")
    if STAMPS:
        a("s_memrealtime s[68:69]")
    a("s_barrier")
    a("s_cmp_lg_u32 s3, 0")
    a("s_cbranch_scc1 L2_wait2")
    a("v_mov_b32 v8, 1")
    a("s_lshl_b32 s10, s5, 2")
    a("v_mov_b32 v9, s10")
    a("s_mov_b64 exec, 1")
    a("buffer_atomic_add v8, v9, s[60:63], 0 offen sc0")
    a("s_waitcnt vmcnt(0)")
    a("v_mov_b32 v9, 0")
    a(f"ds_write_b32 v9, v8 offset:{L2_FLAG}")
    a("s_waitcnt lgkmcnt(0)")
    a("s_mov_b64 exec, -1")
    a("L2_wait2:")
    a("s_barrier")
    a("s_cmp_ge_u32 s3, 2")
    a("s_cbranch_scc1 L2_end")
    a("v_mov_b32 v9, 0")
    a(f"ds_read_b32 v8, v9 offset:{L2_FLAG}")
    a("s_waitcnt lgkmcnt(0)")
    a("v_readfirstlane_b32 s10, v8")
    a("s_cmp_lg_u32 s10, 15")
    a("s_cbranch_scc1 L2_end")
    a("s_lshl_b32 s10, s5, 13")
    a(f"s_add_u32 s10, s10, {OUT_P}")
    for h in range(16):
        if h == 8:
            a("s_add_u32 s10, s10, 0x1000")
        a(f"buffer_load_dword v{32+h}, v5, s[56:59], s10 offen offset:{(h%8)*512} sc1")
    a("s_waitcnt vmcnt(0)")
    for st in (8, 4, 2, 1):
        for i in range(st):
            a(f"v_add_f32 v{32+i}, v{32+i}, v{32+i+st}")
    a("v_cvt_pk_bf16_f32 v32, v32, v32")
    a("s_mul_i32 s10, s3, 896")
    a("s_mul_i32 s11, s6, 448")
    a("s_add_u32 s10, s10, s11")
    a("s_lshl_b32 s11, s7, 6")
    a("s_add_u32 s10, s10, s11")
    a("s_lshl_b32 s10, s10, 1")
    a("v_lshlrev_b32 v8, 1, v1")
    a("buffer_store_short v32, v8, s[48:51], s10 offen")
    a("L2_end:")
    if STAMPS:
        a("s_mov_b64 exec, -1")
        a("s_cmp_lg_u32 s3, 0")
        a("s_cbranch_scc1 L2_exit")
        a("s_waitcnt vmcnt(0)")
        a("s_memrealtime s[70:71]")
        a("s_waitcnt lgkmcnt(0)")
        for k in range(8):
            a(f"v_mov_b32 v{32+k}, s{64+k}")
        a("v_mov_b32 v8, 0")
        a("s_lshl_b32 s10, s2, 5")
        a(f"s_add_u32 s10, s10, {STAMP + 0x10000}")
        a("s_mov_b64 exec, 1")
        a("buffer_store_dwordx4 v[32:35], v8, s[56:59], s10 offen")
        a("buffer_store_dwordx4 v[36:39], v8, s[56:59], s10 offen offset:16")
    a("L2_exit:")
    a("s_endpgm")

def main():
    hdr = open("concat_heads__mha_block_cached__compressed_kv_cla__decode.s.ref").read().split("; Override launch geometry")[0]
    a(hdr.rstrip())
    a(f"; @launch grid=(256,1,1) block=(512,1,1) lds={LDS_K1}")
    a('.amdgcn_target "amdgcn-amd-amdhsa--gfx950"')
    a(".text")
    main_kernel()
    a('.section .rodata,"a"')
    a(".p2align 6")
    kd(KN, 256)
    print("\n".join(OUT))

if __name__ == "__main__":
    sys.path.insert(0, "scratch")
    sys.modules["gen"] = sys.modules[__name__]
    main()
```

```python
def emit(g):
    a, vr, srd = g.a, g.vr, g.srd

    poll = g.poll

    def signal(off, tag, n=0):
        a(f"s_waitcnt vmcnt({n})")
        g.stamp(18)
        a("s_barrier")
        g.stamp(19)
        a("s_cmp_lg_u32 s3, 0")
        a(f"s_cbranch_scc1 L_sg_{tag}")
        g.set_flag(off, 9)
        if g.STAMPS:
            a("s_waitcnt vmcnt(0)")
            g.stamp(20)
        a(f"L_sg_{tag}:")

    LB_Q = 32768
    LB_QA = 33792
    WUK = 32
    QOP = 16
    DD = 96
    SS = 112
    a("L_B1:")
    g.load_kernargs()
    a("s_lshr_b32 s4, s9, 2")
    a("s_lshl_b32 s10, s8, 1")
    a("s_add_u32 s4, s4, s10")
    a("s_and_b32 s14, s9, 3")
    a("v_and_b32 v8, 7, v2")
    a("v_lshlrev_b32 v5, 13, v8")
    a("v_lshrrev_b32 v8, 3, v2")
    a("v_lshl_add_u32 v5, v8, 6, v5")
    a("v_lshl_add_u32 v5, v3, 4, v5")
    a("s_lshl_b32 s10, s14, 8")
    a("s_lshl_b32 s11, s3, 5")
    a("s_add_u32 s10, s10, s11")
    a("s_lshl_b32 s10, s10, 13")
    a("s_lshl_b32 s11, s4, 9")
    a("s_add_u32 s10, s10, s11")
    a("s_waitcnt lgkmcnt(0)")
    srd(48, g.P_WUK, g.P_WUK+1, 1024*8192)
    srd(56, g.P_WS, g.P_WS+1, g.WS_SIZE)
    srd(60, g.P_DBG, g.P_DBG+1, 256)
    a("s_or_b32 s11, s2, s3")
    a("s_cmp_lg_u32 s11, 0")
    a("s_cbranch_scc1 L_B1_nn")
    a("s_memrealtime s[12:13]")
    a("s_waitcnt lgkmcnt(0)")
    a("s_or_b32 s12, s12, 1")
    a("v_mov_b32 v10, s12")
    a("v_mov_b32 v11, s13")
    a("v_mov_b32 v9, 0")
    a("s_mov_b64 exec, 1")
    a("buffer_store_dwordx2 v[10:11], v9, s[60:63], 0 offen sc1")
    a("s_mov_b64 exec, -1")
    a("L_B1_nn:")
    for u in range(4):
        for j in range(4):
            if u*4+j >= g.WB:
                a(f"s_waitcnt vmcnt({g.WB-1})")
            a(f"buffer_load_dwordx4 {vr(WUK+(u*4+j)*4)}, v5, s[48:51], s10 offen offset:{j*128} nt")
        if u < 3:
            a("s_add_u32 s10, s10, 0x10000")
    g.stamp(0)
    poll(64, 4, "qb", 4, True)
    a("v_bfe_u32 v8, v2, 1, 1")
    a("v_lshlrev_b32 v8, 13, v8")
    a("v_and_b32 v9, 1, v2")
    a("v_lshl_add_u32 v8, v9, 6, v8")
    a("v_lshl_add_u32 v8, v3, 4, v8")
    a("s_lshl_b32 s10, s4, 9")
    a(f"s_add_u32 s10, s10, {g.QV + 16384}")
    for j in range(4):
        a(f"buffer_load_dwordx4 {vr(QOP+4*j)}, v8, s[56:59], s10 offen offset:{j*128} sc1")
    a("s_waitcnt vmcnt(0)")
    g.stamp(1)
    for j in range(4):
        for u in range(4):
            c = "0" if j == 0 else vr(DD+4*u)
            a(f"v_mfma_f32_16x16x32_bf16 {vr(DD+4*u)}, {vr(WUK+(u*4+j)*4)}, {vr(QOP+4*j)}, {c}")
    a("s_nop 7")
    a("s_nop 1")
    for p in range(2):
        for i in range(4):
            a(f"v_permlane32_swap_b32 v{DD+8*p+i}, v{DD+8*p+4+i}")
    a("s_nop 0")
    for p in range(2):
        for i in range(4):
            a(f"v_add_f32_dpp v{SS+4*p+i}, v{DD+8*p+4+i}, v{DD+8*p+i} quad_perm:[1,0,3,2] row_mask:0xf bank_mask:0xf")
    for p in range(2):
        a(f"v_cvt_pk_bf16_f32 v{32+2*p}, v{SS+4*p}, v{SS+4*p+1}")
        a(f"v_cvt_pk_bf16_f32 v{33+2*p}, v{SS+4*p+2}, v{SS+4*p+3}")
        for i in range(4):
            if i % 2 == 0:
                a(f"v_lshlrev_b32 v8, 16, v{32+2*p+i//2}")
            else:
                a(f"v_and_b32 v8, 0xffff0000, v{32+2*p+i//2}")
            a(f"v_sub_f32 v{SS+4*p+i}, v{SS+4*p+i}, v8")
        a(f"v_cvt_pk_bf16_f32 v{36+2*p}, v{SS+4*p}, v{SS+4*p+1}")
        a(f"v_cvt_pk_bf16_f32 v{37+2*p}, v{SS+4*p+2}, v{SS+4*p+3}")
    a("v_bfe_u32 v8, v2, 1, 1")
    a("v_lshlrev_b32 v8, 10, v8")
    a("v_lshl_add_u32 v8, v3, 3, v8")
    a("s_lshl_b32 s10, s3, 6")
    a("v_add_u32 v8, s10, v8")
    a("s_mov_b32 exec_lo, 0x00050005")
    a("s_mov_b32 exec_hi, 0x00050005")
    for p in range(2):
        for hl in range(2):
            a(f"ds_write_b64 v8, {vr(32+4*hl+2*p,2)} offset:{LB_QA + hl*512 + p*32}")
    a("s_mov_b64 exec, -1")
    a("s_waitcnt lgkmcnt(0)")
    a("s_barrier")
    a("s_cmp_lg_u32 s3, 0")
    a("s_cbranch_scc1 L_B1_done")
    a("v_lshlrev_b32 v8, 4, v1")
    a(f"ds_read_b128 {vr(32)}, v8 offset:{LB_QA}")
    a(f"ds_read_b128 {vr(36)}, v8 offset:{LB_QA+1024}")
    a("v_lshrrev_b32 v8, 5, v1")
    a("v_lshlrev_b32 v8, 15, v8")
    a("v_and_b32 v9, 31, v1")
    a("v_lshl_add_u32 v8, v9, 4, v8")
    a("s_lshl_b32 s10, s4, 11")
    a("s_lshl_b32 s11, s14, 9")
    a("s_add_u32 s10, s10, s11")
    a(f"s_add_u32 s10, s10, {g.QABS}")
    a("s_add_u32 s11, s10, 0x10000")
    a("s_waitcnt lgkmcnt(0)")
    a(f"buffer_store_dwordx4 {vr(32)}, v8, s[56:59], s10 offen sc1")
    a(f"buffer_store_dwordx4 {vr(36)}, v8, s[56:59], s11 offen sc1")
    a("s_waitcnt vmcnt(0)")
    a("s_lshl_b32 s12, s4, 2")
    a("s_add_u32 s12, s12, s14")
    g.set_flag(128, 12)
    g.stamp(2)
    a("L_B1_done:")
    a("s_lshl_b32 s96, s4, 2")
    a("s_add_u32 s96, s96, s14")
    a("s_and_b32 s5, s96, 1")
    a("s_lshr_b32 s6, s96, 3")
    a("s_bfe_u32 s7, s96, 0x20001")
    a("s_movk_i32 s10, 4682")
    a("v_mul_lo_u32 v8, v1, s10")
    a("v_lshrrev_b32 v8, 16, v8")
    a("v_mul_u32_u24 v9, 14, v8")
    a("v_sub_u32 v9, v1, v9")
    a("v_mul_u32_u24 v8, 896, v8")
    a("v_lshl_add_u32 v8, v9, 4, v8")
    a("s_lshl_b32 s10, s6, 9")
    a("s_lshl_b32 s11, s3, 6")
    a("s_add_u32 s10, s10, s11")
    a("s_mul_i32 s10, s10, 896")
    a("s_mul_i32 s11, s7, 224")
    a("s_add_u32 s10, s10, s11")
    a("s_cmp_eq_u32 s5, 1")
    a(f"s_cselect_b32 s44, s{g.P_BWO}, s{g.P_WO}")
    a(f"s_cselect_b32 s45, s{g.P_BWO+1}, s{g.P_WO+1}")
    a(f"s_mov_b32 s46, {4096*896:#x}")
    a("s_mov_b32 s47, 0x20000")
    a("s_mul_i32 s11, s3, 64*224")
    a(f"s_add_u32 s11, s11, {g.LFW}")
    a("s_mov_b32 exec_hi, 0x00ffffff")
    for i in range(16):
        a("s_mov_b32 m0, s11")
        a(f"s_waitcnt vmcnt({g.WBF-1})")
        a("buffer_load_dwordx4 v8, s[44:47], s10 offen nt lds")
        if i < 15:
            a(f"s_add_u32 s10, s10, {4*896}")
            a(f"s_add_u32 s11, s11, {4*224}")
    a("s_mov_b64 exec, -1")
    a("s_lshr_b32 s5, s14, 1")
    a("s_and_b32 s6, s14, 1")
    a(f"s_mul_i32 s7, s6, {g.TB}")
    a(f"s_add_u32 s7, s7, {4*g.TA}")
    a(f"s_mul_i32 s10, s3, {g.TB0}")
    a("s_add_u32 s7, s7, s10")
    a("s_add_u32 s6, s6, 4")
    g.wave_split(g.TB0, g.TBK)
    g.a_setup()
    a("s_branch L_A_head")

    LB_SC = 131072
    LB_CL = 139264
    LB_TAG = 141312
    CK = 128
    QO = 32
    DQ = 64
    SC = 80
    PP = 112
    ID = 16
    a("L_B2:")
    g.STV = 28
    g.load_kernargs()
    a("s_sub_u32 s9, s9, 8")
    a("s_lshl_b32 s9, s9, 3")
    a("s_add_u32 s9, s9, s8")
    a("s_lshr_b32 s5, s9, 5")
    a("s_and_b32 s6, s9, 31")
    a("s_lshr_b32 s4, s9, 2")
    a("s_and_b32 s14, s9, 3")
    a(f"s_mov_b32 s15, {g.C1:#x}")
    a("s_waitcnt lgkmcnt(0)")
    srd(44, g.P_CKV, g.P_CKV+1, 1 << 24)
    srd(48, g.P_WUV, g.P_WUV+1, 1024*8192)
    srd(56, g.P_WS, g.P_WS+1, g.WS_SIZE)
    srd(60, g.P_DBG, g.P_DBG+1, 256)
    g.stamp(0)
    a("v_and_b32 v8, 7, v2")
    a("v_lshlrev_b32 v5, 11, v8")
    a("v_lshrrev_b32 v8, 3, v2")
    a("v_lshl_add_u32 v5, v8, 6, v5")
    a("v_lshl_add_u32 v5, v3, 4, v5")
    a("s_lshl_b32 s10, s9, 18")
    a("s_lshl_b32 s11, s3, 8")
    a("s_add_u32 s10, s10, s11")
    for u in range(16):
        for j in range(2):
            if u*2+j >= g.WB:
                a(f"s_waitcnt vmcnt({g.WB-1})")
            a(f"buffer_load_dwordx4 {vr(CK+(u*2+j)*4)}, v5, s[44:47], s10 offen offset:{j*128} nt")
        if u < 15:
            a("s_add_u32 s10, s10, 0x4000")
    a("v_lshrrev_b32 v7, 5, v1")
    a("v_lshlrev_b32 v4, 13, v7")
    a("v_and_b32 v8, 31, v1")
    a("v_lshl_add_u32 v4, v8, 4, v4")
    a("s_lshl_b32 s10, s14, 8")
    a("s_lshl_b32 s11, s3, 5")
    a("s_add_u32 s10, s10, s11")
    a("s_lshl_b32 s10, s10, 13")
    a("s_lshl_b32 s11, s4, 9")
    a("s_add_u32 s10, s10, s11")
    a("s_lshl_b32 s11, s3, 13")
    a("s_add_u32 s11, s11, 0x10000")
    for i in range(8):
        a("s_mov_b32 m0, s11")
        a(f"s_waitcnt vmcnt({g.WB-1})")
        a("buffer_load_dwordx4 v4, s[48:51], s10 offen nt lds")
        a("s_add_u32 s10, s10, 0x4000")
        if i < 7:
            a("s_add_u32 s11, s11, 0x400")
    a("s_mov_b32 s97, s10")
    a("v_lshrrev_b32 v8, 3, v2")
    a("v_sub_u32 v8, v3, v8")
    a("v_lshlrev_b32 v8, 2, v8")
    a("v_bfe_u32 v9, v2, 1, 2")
    a("v_add_u32 v8, v8, v9")
    a("v_and_b32 v9, 1, v2")
    a("v_lshlrev_b32 v9, 4, v9")
    a("v_mov_b32 v10, 0x3f80")
    a("v_lshlrev_b32 v9, v9, v10")
    for sel in range(2):
        for w4 in range(4):
            a(f"v_cmp_eq_u32 vcc, {sel*8+w4}, v8")
            a("s_nop 1")
            a(f"v_cndmask_b32 v{ID+4*sel+w4}, 0, v9, vcc")
    a("s_waitcnt lgkmcnt(0)")
    poll(128, 64, "q", None, True)
    a("s_cmp_lg_u32 s3, 0")
    a("s_cbranch_scc1 L_B2_nt")
    a("v_mov_b32 v8, s94")
    a(f"v_mov_b32 v9, {LB_TAG}")
    a("ds_write_b32 v9, v8")
    a("L_B2_nt:")
    g.stamp(1)
    a("v_lshrrev_b32 v8, 1, v2")
    a("v_lshlrev_b32 v6, 11, v8")
    a("v_and_b32 v8, 1, v2")
    a("v_lshl_add_u32 v6, v8, 6, v6")
    a("v_lshl_add_u32 v6, v3, 4, v6")
    a("s_lshl_b32 s10, s5, 16")
    a("s_lshl_b32 s11, s3, 8")
    a("s_add_u32 s10, s10, s11")
    a(f"s_add_u32 s10, s10, {g.QABS}")
    for G in range(2):
        for hl in range(2):
            a(f"s_add_u32 s11, s10, {hl*32768 + G*16384}")
            for j2 in range(2):
                a(f"buffer_load_dwordx4 {vr(QO+((j2*2+G)*2+hl)*4)}, v6, s[56:59], s11 offen offset:{j2*128} sc1")
    a("v_and_b32 v8, 1, v1")
    a("v_cmp_eq_u32 s[98:99], 1, v8")
    a("v_lshlrev_b32 v11, 4, v1")
    a("s_lshl_b32 s11, s3, 13")
    a("v_add_u32 v15, s11, v11")
    a("s_waitcnt vmcnt(0)")
    g.stamp(2)
    for T in range(8):
        for j2 in range(2):
            for hl in range(2):
                for G in range(2):
                    for uu in range(2):
                        d = DQ + (G*2+uu)*4
                        c = "0" if (j2 == 0 and hl == 0) else vr(d)
                        a(f"v_mfma_f32_16x16x32_bf16 {vr(d)}, {vr(CK+((2*T+uu)*2+j2)*4)}, {vr(QO+((j2*2+G)*2+hl)*4)}, {c}")
        a("s_nop 7")
        a("s_nop 1")
        for G in range(2):
            for i in range(4):
                a(f"v_permlane32_swap_b32 v{DQ+G*8+i}, v{DQ+G*8+4+i}")
        a("s_nop 0")
        for i in range(4):
            a(f"v_add_f32_dpp v{DQ+i}, v{DQ+4+i}, v{DQ+i} quad_perm:[1,0,3,2] row_mask:0xf bank_mask:0xf")
            a(f"v_add_f32_dpp v{DQ+12+i}, v{DQ+8+i}, v{DQ+12+i} quad_perm:[1,0,3,2] row_mask:0xf bank_mask:0xf")
        for i in range(4):
            a(f"v_cndmask_b32 v{SC+4*T+i}, v{DQ+i}, v{DQ+12+i}, s[98:99]")
        a(f"ds_write_b128 v15, {vr(SC+4*T)} offset:{T*1024}")
    g.stamp(13)
    a("s_waitcnt lgkmcnt(0)")
    a("s_barrier")
    a("s_lshl_b32 s11, s3, 10")
    a("v_add_u32 v15, s11, v11")
    for w in range(8):
        a(f"ds_read_b128 {vr(SC+4*w)}, v15 offset:{w*8192}")
    a("s_waitcnt lgkmcnt(0)")
    for st in (4, 2, 1):
        for w in range(st):
            for i in range(4):
                a(f"v_add_f32 v{SC+4*w+i}, v{SC+4*w+i}, v{SC+4*(w+st)+i}")
    a(f"v_add_u32 v15, {LB_SC}, v15")
    a(f"ds_write_b128 v15, {vr(SC)}")
    a(f"v_add_u32 v11, {LB_SC}, v11")
    a("s_waitcnt lgkmcnt(0)")
    a("s_barrier")
    g.stamp(15)
    for T in range(8):
        a(f"ds_read_b128 {vr(SC+4*T)}, v11 offset:{T*1024}")
    a("s_waitcnt lgkmcnt(0)")
    a(f"v_max_f32 v12, v{SC}, v{SC+1}")
    for k in range(2, 32, 2):
        a(f"v_max3_f32 v12, v12, v{SC+k}, v{SC+k+1}")
    g.cross_g("v_max_f32", 12, 8)
    a("v_mul_f32 v9, s15, v12")
    for k in range(32):
        a(f"v_fma_f32 v{SC+k}, v{SC+k}, s15, -v9")
    for k in range(32):
        a(f"v_exp_f32 v{SC+k}, v{SC+k}")
    a("s_nop 0")
    a(f"v_add_f32 v13, v{SC}, v{SC+1}")
    for k in range(2, 32):
        a(f"v_add_f32 v13, v13, v{SC+k}")
    for k in range(0, 32, 2):
        a(f"v_cvt_pk_bf16_f32 v{PP+k//2}, v{SC+k}, v{SC+k+1}")
    g.cross_g("v_add_f32", 13, 8)
    a("v_lshrrev_b32 v14, 1, v2")
    a("v_and_b32 v8, 1, v2")
    a("v_lshl_add_u32 v14, v8, 3, v14")
    a("s_cmp_lg_u32 s3, 0")
    a("s_cbranch_scc1 L_B2_nostat")
    a("v_lshlrev_b32 v8, 3, v14")
    a("s_lshl_b32 s10, s9, 7")
    a(f"s_add_u32 s10, s10, {g.B_STAT}")
    a("s_mov_b64 exec, 0xffff")
    a("buffer_store_dwordx2 v[12:13], v8, s[56:59], s10 offen sc1")
    a("s_mov_b64 exec, -1")
    a("L_B2_nostat:")
    g.stamp(16)
    AC = 32
    DT = [64, 72, 80, 88]
    XY = [96, 100, 104, 108]
    groups = [(T, j2, sel) for T in range(8) for j2 in range(2) for sel in range(2)]
    NG = len(groups)
    def st1(n):
        T, j2, sel = groups[n]
        d = DT[n % 4]
        for uu in range(2):
            a(f"v_mfma_f32_16x16x32_bf16 {vr(d+4*uu)}, {vr(CK+((2*T+uu)*2+j2)*4)}, {vr(ID+4*sel)}, 0")
    def st2(n):
        d = DT[n % 4]; x = XY[n % 4]
        a(f"v_cvt_pk_bf16_f32 v{x}, v{d}, v{d+1}")
        a(f"v_cvt_pk_bf16_f32 v{x+1}, v{d+2}, v{d+3}")
        a(f"v_cvt_pk_bf16_f32 v{x+2}, v{d+4}, v{d+5}")
        a(f"v_cvt_pk_bf16_f32 v{x+3}, v{d+6}, v{d+7}")
    def st3(n):
        x = XY[n % 4]
        a(f"v_permlane32_swap_b32 v{x}, v{x+2}")
        a(f"v_permlane32_swap_b32 v{x+1}, v{x+3}")
    def st4(n):
        T, j2, sel = groups[n]
        x = XY[n % 4]
        for k in range(2):
            ac = AC + 4 * (j2*4 + 2*k + sel)
            c = "0" if T == 0 else vr(ac)
            a(f"v_mfma_f32_16x16x16_bf16 {vr(ac)}, {vr(x+2*k,2)}, {vr(PP+2*T,2)}, {c}")
    for n in range(NG + 4):
        if n < NG:
            st1(n)
        else:
            a("s_nop 1")
        if 0 <= n - 4 < NG:
            st4(n - 4)
        else:
            a("s_nop 1")
        if 0 <= n - 3 < NG:
            st3(n - 3)
        else:
            a("s_nop 1")
        if 0 <= n - 2 < NG:
            st2(n - 2)
        else:
            a("s_nop 3")
    a("s_nop 7")
    a("s_nop 7")
    g.stamp(17)
    for ai in range(8):
        a(f"v_cvt_pk_bf16_f32 v{64+2*ai}, v{AC+4*ai}, v{AC+4*ai+1}")
        a(f"v_cvt_pk_bf16_f32 v{65+2*ai}, v{AC+4*ai+2}, v{AC+4*ai+3}")
    a("v_lshlrev_b32 v8, 6, v14")
    a("v_and_b32 v9, 1, v3")
    a("v_lshl_add_u32 v8, v9, 5, v8")
    a("v_lshrrev_b32 v9, 1, v3")
    a("v_lshl_add_u32 v8, v9, 4, v8")
    for m in range(4):
        a(f"v_permlane16_swap_b32 v{64+4*m}, v{66+4*m}")
        a(f"v_permlane16_swap_b32 v{65+4*m}, v{67+4*m}")
    a("s_lshl_b32 s10, s9, 15")
    a("s_lshl_b32 s11, s3, 12")
    a("s_add_u32 s10, s10, s11")
    a(f"s_add_u32 s10, s10, {g.B_PART}")
    for m in range(4):
        a(f"buffer_store_dwordx4 {vr(64+4*m)}, v8, s[56:59], s10 offen offset:{m*1024} sc1")
    g.stamp(3)
    signal(192, "p", 0)
    a("s_lshl_b32 s11, s3, 13")
    for i in range(8):
        a("s_mov_b32 m0, s11")
        a(f"s_waitcnt vmcnt({g.WBF-1})")
        a("buffer_load_dwordx4 v4, s[48:51], s97 offen nt lds")
        if i < 7:
            a("s_add_u32 s97, s97, 0x4000")
            a("s_add_u32 s11, s11, 0x400")
    poll(192, 64, "p")
    g.stamp(4)
    a("v_lshlrev_b32 v8, 7, v1")
    a("s_lshl_b32 s10, s4, 3")
    a(f"s_add_u32 s10, s10, {g.B_STAT}")
    a("buffer_load_dwordx2 v[12:13], v8, s[56:59], s10 offen sc1")
    a("v_lshrrev_b32 v10, 2, v1")
    a("v_lshlrev_b32 v8, 15, v10")
    a("v_and_b32 v9, 3, v1")
    a("v_lshl_add_u32 v8, v9, 4, v8")
    a("s_lshl_b32 s10, s14, 3")
    a("s_add_u32 s10, s10, s3")
    a("s_lshl_b32 s10, s10, 10")
    a("s_lshl_b32 s11, s4, 6")
    a("s_add_u32 s10, s10, s11")
    a(f"s_add_u32 s10, s10, {g.B_PART}")
    for i in range(4):
        a(f"buffer_load_dwordx4 {vr(32+4*i)}, v8, s[56:59], s10 offen sc1")
        if i < 3:
            a("s_add_u32 s10, s10, 0x80000")
    a("s_waitcnt vmcnt(4)")
    g.stamp(24)
    def allred32(op, reg, tmp):
        for r in (1, 2, 4, 8):
            a("s_nop 1")
            a(f"{op}_dpp v{reg}, v{reg}, v{reg} row_ror:{r} row_mask:0xf bank_mask:0xf")
        a(f"v_mov_b32 v{tmp}, v{reg}")
        a("s_nop 1")
        a(f"v_permlane16_swap_b32 v{reg}, v{tmp}")
        a("s_nop 1")
        a(f"{op} v{reg}, v{reg}, v{tmp}")
    a("v_mov_b32 v14, v12")
    allred32("v_max_f32", 14, 8)
    a("v_sub_f32 v12, v12, v14")
    a("v_mul_f32 v12, s15, v12")
    a("v_exp_f32 v12, v12")
    a("s_nop 0")
    a("v_mul_f32 v13, v12, v13")
    allred32("v_add_f32", 13, 8)
    a("v_rcp_f32 v14, v13")
    a("s_nop 0")
    a("v_fma_f32 v15, -v13, v14, 1.0")
    a("v_fmac_f32 v14, v15, v14")
    a("v_mul_f32 v12, v12, v14")
    a("v_lshlrev_b32 v10, 2, v10")
    for i in range(4):
        a(f"v_add_u32 v8, {i*64}, v10")
        a(f"ds_bpermute_b32 v{64+i}, v8, v12")
    a("s_waitcnt vmcnt(0) lgkmcnt(0)")
    g.stamp(25)
    a("s_lshl_b32 s11, s3, 13")
    a("v_lshlrev_b32 v11, 4, v1")
    a("v_add_u32 v11, s11, v11")
    a("v_add_u32 v15, 0x10000, v11")
    for i in range(16):
        a(f"ds_read_b128 {vr(128+4*i)}, {'v15' if i < 8 else 'v11'} offset:{(i%8)*1024}")
    for b in range(2):
        for ii in range(2):
            i = 2*b + ii
            for k in range(4):
                a(f"v_lshlrev_b32 v8, 16, v{32+4*i+k}")
                a(f"v_and_b32 v14, 0xffff0000, v{32+4*i+k}")
                if ii == 0:
                    a(f"v_mul_f32 v{72+8*b+2*k}, v{64+i}, v8")
                    a(f"v_mul_f32 v{73+8*b+2*k}, v{64+i}, v14")
                else:
                    a(f"v_fmac_f32 v{72+8*b+2*k}, v{64+i}, v8")
                    a(f"v_fmac_f32 v{73+8*b+2*k}, v{64+i}, v14")
    a("s_nop 1")
    for k in range(16):
        a(f"v_add_f32_dpp v{72+k}, v{72+k}, v{72+k} row_ror:4 row_mask:0xf bank_mask:0xf")
    g.red8(72, 16, 88)
    a("s_lshl_b32 s10, s3, 8")
    a(f"s_add_u32 s10, s10, {LB_CL}")
    a("v_lshlrev_b32 v8, 5, v9")
    a("v_add_u32 v8, s10, v8")
    a("s_mov_b64 exec, 0xf")
    for b in range(2):
        a(f"ds_write_b128 v8, {vr(72+8*b)} offset:{b*128}")
        a(f"ds_write_b128 v8, {vr(76+8*b)} offset:{b*128+16}")
    a("s_mov_b64 exec, -1")
    a("v_lshlrev_b32 v8, 2, v7")
    a("v_add_u32 v8, s10, v8")
    a("s_waitcnt lgkmcnt(0)")
    for b in range(2):
        for i in range(16):
            a(f"ds_read_b32 v{32+16*b+i}, v8 offset:{b*128 + i*8}")
    for k in range(16):
        a(f"v_mov_b32 v{96+k}, 0")
    a("s_waitcnt lgkmcnt(0)")
    for i in range(16):
        for w in range(4):
            a(f"v_lshlrev_b32 v8, 16, v{128+4*i+w}")
            a(f"v_and_b32 v9, 0xffff0000, v{128+4*i+w}")
            for b in range(2):
                a(f"v_fmac_f32 v{96+8*b+2*w}, v8, v{32+16*b+i}")
                a(f"v_fmac_f32 v{96+8*b+2*w+1}, v9, v{32+16*b+i}")
    g.stamp(26)
    a("v_lshlrev_b32 v8, 10, v7")
    a("v_and_b32 v9, 31, v1")
    a("v_lshl_add_u32 v8, v9, 5, v8")
    a("v_add_u32 v8, s11, v8")
    for b in range(2):
        a(f"ds_write_b128 v8, {vr(96+8*b)} offset:{b*2048}")
        a(f"ds_write_b128 v8, {vr(100+8*b)} offset:{b*2048+16}")
    a("s_waitcnt lgkmcnt(0)")
    a("s_barrier")
    a("v_and_b32 v8, 255, v0")
    a("v_lshlrev_b32 v8, 2, v8")
    a("v_lshrrev_b32 v9, 8, v0")
    a("v_lshl_add_u32 v8, v9, 11, v8")
    for w in range(8):
        for hf in range(2):
            a(f"ds_read_b32 v{32+2*w+hf}, v8 offset:{w*8192 + hf*1024}")
    a("s_waitcnt lgkmcnt(0)")
    for st in (8, 4, 2, 1):
        for i in range(st):
            a(f"v_add_f32 v{32+i}, v{32+i}, v{32+i+st}")
    a("s_lshl_b32 s10, s9, 11")
    a(f"s_add_u32 s10, s10, {g.CTX_P}")
    a("v_lshlrev_b32 v8, 2, v0")
    a("buffer_store_dword v32, v8, s[56:59], s10 offen sc1")
    g.stamp(5)
    signal(448, "c", 0)
    a("s_branch L_end")
    emit_f1(g)

def emit_f1(g):
    a, vr, srd, poll = g.a, g.vr, g.srd, g.poll
    LFW = g.LFW
    LF_O = 0
    LF_S = 2048
    LF_R = 4096
    g.STV = 8
    a("L_F1:")
    a("s_and_b32 s5, s96, 1")
    a("s_lshr_b32 s6, s96, 3")
    a("s_bfe_u32 s7, s96, 0x20001")
    srd(52, g.P_OUT, g.P_OUT+1, 1792*2)
    a("v_mov_b32 v9, 0")
    a(f"ds_read_b32 v26, v9 offset:{g.LA_Q+512}")
    a("s_waitcnt lgkmcnt(0)")
    a("s_barrier")
    a("s_cmp_eq_u32 s5, 1")
    a("s_cbranch_scc1 L_F1_B")
    a("s_cmp_lg_u32 s3, 0")
    a("s_cbranch_scc1 L_F1_Aw")
    a("v_cmp_le_u32 vcc, 12, v1")
    a("v_mov_b32 v8, 84")
    a("s_nop 1")
    a("v_cndmask_b32 v8, 0, v8, vcc")
    a("v_add_u32 v8, v8, v1")
    a("v_lshlrev_b32 v9, 12, v8")
    a("s_mul_i32 s10, s6, 12*4096")
    a(f"s_add_u32 s10, s10, {g.A_PART:#x}")
    a("s_mov_b32 s11, 0")
    a("s_mov_b64 exec, 0xffffff")
    a("L_pl_fa:")
    a("buffer_load_dwordx4 v[32:35], v9, s[56:59], s10 offen offset:2048 sc1")
    a("s_waitcnt vmcnt(0)")
    a("v_xor_b32 v10, v33, v26")
    a("v_xor_b32 v11, v35, v26")
    a("v_or_b32 v10, v10, v11")
    a("v_cmp_ne_u32 vcc, 0, v10")
    a("s_cmp_eq_u64 vcc, 0")
    a("s_cbranch_scc1 L_pd_fa")
    a(f"s_sleep {g.SLPF}")
    a("s_add_u32 s11, s11, 1")
    a("s_cmp_lt_u32 s11, 0x40000")
    a("s_cbranch_scc1 L_pl_fa")
    a("L_pd_fa:")
    a("v_lshlrev_b32 v8, 4, v1")
    a(f"ds_write_b128 v8, v[32:35] offset:{LF_S}")
    a("s_mov_b64 exec, -1")
    a("s_waitcnt lgkmcnt(0)")
    a("L_F1_Aw:")
    a("s_barrier")
    g.stamp(21)
    a("s_lshr_b32 s12, s3, 2")
    a("s_lshl_b32 s10, s6, 1")
    a("s_add_u32 s10, s10, s12")
    a("s_mul_i32 s10, s10, 6")
    a("s_lshl_b32 s11, s10, 12")
    a(f"s_add_u32 s11, s11, {g.A_PART}")
    a("v_and_b32 v8, 255, v0")
    a("v_lshlrev_b32 v8, 3, v8")
    a("s_mul_i32 s12, s12, 96")
    a("v_mov_b32 v9, s12")
    for b in range(2):
        for sp in range(6):
            a(f"ds_read_b128 {vr(128+4*(b*6+sp))}, v9 offset:{LF_S + b*192 + sp*16}")
    a("s_mov_b32 s12, 0")
    a("L_fa_ld:")
    for b in range(2):
        for sp in range(6):
            a(f"s_add_u32 s13, s11, {b*96*4096 + sp*4096}")
            a(f"buffer_load_dwordx2 v[{32+2*(b*6+sp)}:{33+2*(b*6+sp)}], v8, s[56:59], s13 offen sc1")
    a("s_cmp_lg_u32 s12, 0")
    a("s_cbranch_scc1 L_fa_w")
    a("s_waitcnt lgkmcnt(0)")
    for b in range(2):
        st = 128 + b*24
        a(f"v_max_f32 v10, v{st}, v{st+4}")
        a(f"v_max3_f32 v10, v10, v{st+8}, v{st+12}")
        a(f"v_max3_f32 v10, v10, v{st+16}, v{st+20}")
        for sp in range(6):
            a(f"v_sub_f32 v{st+4*sp}, v{st+4*sp}, v10")
            a(f"v_mul_f32 v{st+4*sp}, s15, v{st+4*sp}")
            a(f"v_exp_f32 v{st+4*sp}, v{st+4*sp}")
        a("s_nop 0")
        a(f"v_mul_f32 v11, v{st}, v{st+2}")
        for sp in range(1, 6):
            a(f"v_fmac_f32 v11, v{st+4*sp}, v{st+4*sp+2}")
        a(f"v_rcp_f32 v{20+b}, v11")
        a("s_nop 0")
        a(f"v_fma_f32 v13, -v11, v{20+b}, 1.0")
        a(f"v_fmac_f32 v{20+b}, v13, v{20+b}")
    a("L_fa_w:")
    a("s_waitcnt vmcnt(0)")
    a("v_xor_b32 v12, v33, v26")
    for u in range(1, 12):
        a(f"v_xor_b32 v13, v{33+2*u}, v26")
        a("v_or_b32 v12, v12, v13")
    a("v_cmp_ne_u32 vcc, 0, v12")
    a("s_cmp_eq_u64 vcc, 0")
    a("s_cbranch_scc1 L_fa_ok")
    a("s_add_u32 s12, s12, 1")
    a("s_cmp_lt_u32 s12, 0x40000")
    a("s_cbranch_scc1 L_fa_ld")
    a("L_fa_ok:")
    for b in range(2):
        st = 128 + b*24
        a(f"v_mul_f32 v{10+b}, v{st}, v{32+12*b}")
        for sp in range(1, 6):
            a(f"v_fmac_f32 v{10+b}, v{st+4*sp}, v{32+12*b+2*sp}")
        a(f"v_mul_f32 v{10+b}, v{10+b}, v{20+b}")
    a("s_branch L_F1_j")
    a("L_F1_B:")
    a("s_lshl_b32 s12, s6, 1")
    poll(448, 8, "fb", 12)
    g.stamp(21)
    a("s_lshr_b32 s12, s3, 2")
    a("s_lshl_b32 s10, s6, 1")
    a("s_add_u32 s10, s10, s12")
    a("s_lshl_b32 s11, s10, 13")
    a(f"s_add_u32 s11, s11, {g.CTX_P}")
    a("v_and_b32 v8, 255, v0")
    a("v_lshlrev_b32 v8, 2, v8")
    for qt in range(4):
        a(f"s_add_u32 s13, s11, {qt*2048}")
        for b in range(2):
            a(f"buffer_load_dword v{64+b*4+qt}, v8, s[56:59], s13 offen offset:{b*1024} sc1")
    a("s_waitcnt vmcnt(0)")
    for b in range(2):
        a(f"v_add_f32 v{10+b}, v{64+b*4}, v{65+b*4}")
        a(f"v_add_f32 v12, v{66+b*4}, v{67+b*4}")
        a(f"v_add_f32 v{10+b}, v{10+b}, v12")
    a("L_F1_j:")
    g.STV = 28
    g.stamp(27)
    a("v_cvt_pk_bf16_f32 v12, v10, v11")
    a("v_lshlrev_b32 v8, 1, v0")
    a(f"ds_write_b16 v8, v12 offset:{LF_O}")
    a(f"ds_write_b16_d16_hi v8, v12 offset:{LF_O+1024}")
    a("v_min_u32 v8, 13, v2")
    a("v_lshlrev_b32 v8, 4, v8")
    a("v_mul_u32_u24 v9, 896, v3")
    a("v_add_u32 v8, v8, v9")
    a("s_mul_i32 s10, s3, 64*224")
    a(f"s_add_u32 s10, s10, {LFW}")
    a("v_add_u32 v8, s10, v8")
    for T in range(4):
        for i in range(4):
            a(f"ds_read_b128 {vr(128+16*T+4*i)}, v8 offset:{T*16*224 + i*224}")
    a("s_waitcnt lgkmcnt(0)")
    a("s_barrier")
    a("v_and_b32 v8, 1, v2")
    a("v_lshlrev_b32 v8, 10, v8")
    a("v_lshl_add_u32 v8, v3, 3, v8")
    a("s_lshl_b32 s10, s3, 7")
    a("v_add_u32 v8, s10, v8")
    for T in range(4):
        a(f"ds_read_b64 v[{64+2*T}:{65+2*T}], v8 offset:{LF_O + T*32}")
    for T in range(4):
        for w in range(4):
            R = [128 + 16*T + 4*i + w for i in range(4)]
            P = 192 + 16*T + 4*w
            a(f"v_perm_b32 v{P}, v{R[1]}, v{R[0]}, s100")
            a(f"v_perm_b32 v{P+1}, v{R[3]}, v{R[2]}, s100")
            a(f"v_perm_b32 v{P+2}, v{R[1]}, v{R[0]}, s101")
            a(f"v_perm_b32 v{P+3}, v{R[3]}, v{R[2]}, s101")
    a("s_waitcnt lgkmcnt(0)")
    for T in range(4):
        for w in range(4):
            for e in range(2):
                ac = 96 + 4*(2*w+e)
                c = "0" if T == 0 else vr(ac)
                a(f"v_mfma_f32_16x16x16_bf16 {vr(ac)}, v[{64+2*T}:{65+2*T}], {vr(192+16*T+4*w+2*e,2)}, {c}")
    a("s_nop 7")
    a("s_nop 7")
    g.stamp(28)
    for k in range(8):
        a(f"v_mov_b32 v{32+k}, v{96+4*k}")
        a(f"v_mov_b32 v{40+k}, v{97+4*k}")
    a("s_lshl_b32 s10, s3, 10")
    a("v_lshlrev_b32 v8, 5, v2")
    a("v_add_u32 v8, s10, v8")
    a("s_mov_b64 exec, 0x3fff")
    a(f"ds_write_b128 v8, {vr(32)} offset:{LF_R}")
    a(f"ds_write_b128 v8, {vr(36)} offset:{LF_R+16}")
    a(f"ds_write_b128 v8, {vr(40)} offset:{LF_R+512}")
    a(f"ds_write_b128 v8, {vr(44)} offset:{LF_R+528}")
    a("s_mov_b64 exec, -1")
    a("s_waitcnt lgkmcnt(0)")
    a("s_barrier")
    a("s_cmp_ge_u32 s3, 4")
    a("s_cbranch_scc1 L_end")
    a("v_and_b32 v12, 127, v0")
    a("v_lshrrev_b32 v13, 7, v0")
    a("v_lshlrev_b32 v8, 2, v0")
    for w in range(8):
        a(f"ds_read_b32 v{32+w}, v8 offset:{LF_R + w*1024}")
    a("s_waitcnt lgkmcnt(0)")
    for st in (4, 2, 1):
        for i in range(st):
            a(f"v_add_f32 v{32+i}, v{32+i}, v{32+i+st}")
    a("s_lshl_b32 s12, s5, 2")
    a("s_add_u32 s12, s12, s7")
    a("s_lshl_b32 s10, s12, 3")
    a("s_add_u32 s10, s10, s6")
    a("s_lshl_b32 s10, s10, 11")
    a(f"s_add_u32 s10, s10, {g.OUT_P}")
    a("v_lshlrev_b32 v14, 3, v0")
    a("v_mov_b32 v33, v26")
    a("buffer_store_dwordx2 v[32:33], v14, s[56:59], s10 offen sc1")
    g.stamp(22)
    a("s_cmp_lg_u32 s6, 0")
    a("s_cbranch_scc1 L_end")
    a("s_mov_b32 s12, 0")
    a("s_add_u32 s11, s10, 0x1000")
    a("s_add_u32 s13, s10, 0x2000")
    a("s_add_u32 s93, s10, 0x3000")
    a("L_f2_ld:")
    for hp in range(1, 8):
        sr = ["s10", "s11", "s13", "s93"][hp // 2]
        a(f"buffer_load_dwordx2 v[{64+2*hp}:{65+2*hp}], v14, s[56:59], {sr} offen offset:{(hp%2)*2048} sc1")
    a("s_waitcnt vmcnt(0)")
    a("v_xor_b32 v8, v67, v26")
    for hp in range(2, 8):
        a(f"v_xor_b32 v9, v{65+2*hp}, v26")
        a("v_or_b32 v8, v8, v9")
    a("v_cmp_ne_u32 vcc, 0, v8")
    a("s_cmp_eq_u64 vcc, 0")
    a("s_cbranch_scc1 L_f2_ok")
    a("s_sleep 2")
    a("s_add_u32 s12, s12, 1")
    a("s_cmp_lt_u32 s12, 0x40000")
    a("s_cbranch_scc1 L_f2_ld")
    a("L_f2_ok:")
    g.stamp(23)
    for hp in range(1, 8):
        a(f"v_mov_b32 v{32+hp}, v{64+2*hp}")
    for st in (4, 2, 1):
        for i in range(st):
            a(f"v_add_f32 v{32+i}, v{32+i}, v{32+i+st}")
    a("v_cvt_pk_bf16_f32 v32, v32, v32")
    a("s_mul_i32 s10, s5, 448")
    a("s_mul_i32 s11, s7, 112")
    a("s_add_u32 s10, s10, s11")
    a("s_lshl_b32 s10, s10, 1")
    a("v_mul_u32_u24 v8, 896, v13")
    a("v_add_u32 v8, v8, v12")
    a("v_lshlrev_b32 v8, 1, v8")
    a("v_cmp_gt_u32 vcc, 112, v12")
    a("s_and_saveexec_b64 s[12:13], vcc")
    a("buffer_store_short v32, v8, s[52:55], s10 offen")
    if g.DBGT:
        a("s_mov_b64 exec, -1")
        a("s_cmp_lg_u32 s3, 0")
        a("s_cbranch_scc1 L_end")
        a("s_waitcnt vmcnt(0)")
        a("s_memrealtime s[12:13]")
        a("s_waitcnt lgkmcnt(0)")
        a("s_sub_u32 s12, s12, s94")
        a("v_mov_b32 v8, s12")
        a("s_lshl_b32 s10, s5, 2")
        a("s_add_u32 s10, s10, s7")
        a("s_lshl_b32 s10, s10, 2")
        a("s_add_u32 s10, s10, 8")
        a("v_mov_b32 v9, s10")
        a("s_mov_b64 exec, 1")
        a("buffer_store_dword v8, v9, s[60:63], 0 offen")
    a("s_branch L_end")
```

```python
import sys

KN = "concat_heads__mha_block_cached__compressed_kv_cla__decode_kernel"
OUT = []
def a(s):
    OUT.append(s)

A_PART = 0x500000
A_STAT = 0x30000
QABS   = 0x40000
B_STAT = 0x60000
CTX_P  = 0x64000
OUT_P  = 0x90000
QV     = 0xB0000
FLAGS  = 0xE0000
STAMP  = 0xC0000
B_PART = 0x100000
WS_SIZE = 0x10000000

C1 = 0x3DB8AA3B
LDS_K1 = 163840
LFW = 40960

STAMPS = "--stamps" in sys.argv
DBGT = "--dbgt" in sys.argv
LOCKSTEP = False
def argval(name, default):
    for x in sys.argv:
        if x.startswith(name + "="):
            return int(x.split("=")[1])
    return default
TA = argval("TA", 48)
TB = (256 - 4 * TA) // 2
assert 4 * TA + 2 * TB == 256
TA0, TAK = TA // 8, TA % 8
TB0, TBK = TB // 8, TB % 8
NOQ = "--noq" in sys.argv
NOB = "--nob" in sys.argv
WQNT = "--wqnt" in sys.argv

def srd(dst, lo, hi, size):
    a(f"s_mov_b32 s{dst}, s{lo}")
    a(f"s_mov_b32 s{dst+1}, s{hi}")
    a(f"s_mov_b32 s{dst+2}, {size:#x}")
    a(f"s_mov_b32 s{dst+3}, 0x20000")

def srd_off(dst, lo, hi, soff, size):
    a(f"s_add_u32 s{dst}, s{lo}, s{soff}")
    a(f"s_addc_u32 s{dst+1}, s{hi}, 0")
    a(f"s_mov_b32 s{dst+2}, {size:#x}")
    a(f"s_mov_b32 s{dst+3}, 0x20000")

def load_kernargs():
    a("s_load_dwordx16 s[16:31], s[0:1], 0")
    a("s_load_dwordx8 s[32:39], s[0:1], 64")
    a("s_load_dwordx4 s[40:43], s[0:1], 96")

P_AX, P_K, P_V, P_WQ, P_WO, P_BX, P_CKV, P_BWQ, P_WUK, P_WUV, P_BWO, P_OUT, P_DBG, P_WS = [16 + 2 * i for i in range(14)]

def vr(b, n=4):
    return f"v[{b}:{b+n-1}]"

LDS_STAMP = 163584
STV = 8
def stamp(idx):
    if not STAMPS:
        return
    lab = f"L_st{len(OUT)}"
    a(f"s_cmp_lg_u32 s3, 0")
    a(f"s_cbranch_scc1 {lab}")
    a("s_memrealtime s[88:89]")
    a("s_waitcnt lgkmcnt(0)")
    a(f"v_mov_b32 v{STV}, s88")
    a(f"v_mov_b32 v{STV+1}, s89")
    a(f"v_mov_b32 v{STV+2}, {LDS_STAMP + idx*8}")
    a("s_mov_b64 s[90:91], exec")
    a("s_mov_b64 exec, 1")
    a(f"ds_write_b64 v{STV+2}, v[{STV}:{STV+1}]")
    a("s_mov_b64 exec, s[90:91]")
    a("s_waitcnt lgkmcnt(0)")
    a(f"{lab}:")

def stamp_init():
    if not STAMPS:
        return
    a("v_mov_b32 v8, 0")
    a("v_mov_b32 v9, 0")
    a("v_lshlrev_b32 v10, 3, v1")
    a(f"v_add_u32 v10, {LDS_STAMP}, v10")
    a("s_mov_b64 exec, 0xffffffff")
    a("ds_write_b64 v10, v[8:9]")
    a("s_mov_b64 exec, -1")
    a("s_waitcnt lgkmcnt(0)")

def stamp_dump():
    if not STAMPS:
        return
    a("s_mov_b64 exec, -1")
    a("s_cmp_lg_u32 s3, 0")
    a("s_cbranch_scc1 L_exit")
    stamp(31)
    a("v_lshlrev_b32 v10, 3, v1")
    a(f"v_add_u32 v11, {LDS_STAMP}, v10")
    a("s_mov_b64 exec, 0xffffffff")
    a("ds_read_b64 v[8:9], v11")
    a("s_lshl_b32 s12, s2, 8")
    a(f"s_add_u32 s12, s12, {STAMP}")
    a("s_waitcnt lgkmcnt(0)")
    a("buffer_store_dwordx2 v[8:9], v10, s[56:59], s12 offen")

def get_nonce(tag):
    a("v_mov_b32 v9, 0")
    a("s_mov_b32 s11, 0")
    a(f"L_nl_{tag}:")
    a("buffer_load_dwordx2 v[10:11], v9, s[60:63], 0 offen sc1")
    a("s_waitcnt vmcnt(0)")
    a("v_readfirstlane_b32 s94, v10")
    a("v_readfirstlane_b32 s95, v11")
    a("s_cmp_lg_u64 s[94:95], 0")
    a(f"s_cbranch_scc1 L_nd_{tag}")
    a("s_sleep 4")
    a("s_add_u32 s11, s11, 1")
    a("s_cmp_lt_u32 s11, 0x40000")
    a(f"s_cbranch_scc1 L_nl_{tag}")
    a(f"L_nd_{tag}:")

def poll_loop(tag, first, n, offreg, slp):
    a("v_lshlrev_b32 v9, 7, v1")
    a(f"s_mov_b32 s10, {FLAGS + first*128:#x}")
    if offreg is not None:
        a(f"s_lshl_b32 s11, s{offreg}, 9")
        a("s_add_u32 s10, s10, s11")
    a("s_mov_b32 s11, 0")
    if n < 64:
        a(f"s_mov_b64 exec, {(1 << n) - 1:#x}")
    a(f"L_pl_{tag}:")
    a(f"buffer_load_dwordx2 v[10:11], v9, s[56:59], s10 offen sc1")
    a("s_waitcnt vmcnt(0)")
    a("v_cmp_ne_u64 vcc, s[94:95], v[10:11]")
    a("s_cmp_eq_u64 vcc, 0")
    a(f"s_cbranch_scc1 L_pd_{tag}")
    a(f"s_sleep {slp}")
    a("s_add_u32 s11, s11, 1")
    a("s_cmp_lt_u32 s11, 0x40000")
    a(f"s_cbranch_scc1 L_pl_{tag}")
    a(f"L_pd_{tag}:")
    a("s_mov_b64 exec, -1")

def poll(first, n, tag, offreg=None, nonce=False):
    a("s_cmp_lg_u32 s3, 0")
    a(f"s_cbranch_scc1 L_pw_{tag}")
    if nonce:
        get_nonce(tag)
    poll_loop(tag, first, n, offreg, SLP)
    a(f"L_pw_{tag}:")
    a("s_barrier")

def set_flag(first, sreg):
    a("v_mov_b32 v10, s94")
    a("v_mov_b32 v11, s95")
    a(f"s_lshl_b32 s10, s{sreg}, 7")
    a(f"s_add_u32 s10, s10, {FLAGS + first*128:#x}")
    a("v_mov_b32 v9, 0")
    a("s_mov_b64 exec, 1")
    a("buffer_store_dwordx2 v[10:11], v9, s[56:59], s10 offen sc1")
    a("s_mov_b64 exec, -1")

def wave_split(n0, k):
    a("s_sub_u32 s10, s3, 1")
    a("s_max_i32 s10, s10, 0")
    a(f"s_min_u32 s10, s10, {k}")
    a("s_add_u32 s7, s7, s10")
    a("s_sub_u32 s10, s3, 1")
    a(f"s_cmp_lt_u32 s10, {k}")
    a(f"s_cselect_b32 s14, {n0+1}, {n0}")

def s0_task():
    LS_P = 0
    LS_Q = 4096
    W0, X0, A0, T0 = 128, 160, 176, 192
    a("s_lshr_b32 s92, s13, 6")
    a("s_and_b32 s93, s13, 63")
    a("s_lshl_b32 s93, s93, 7")
    a("v_lshrrev_b32 v10, 3, v1")
    a("v_and_b32 v11, 7, v1")
    a("v_lshlrev_b32 v4, 13, v10")
    a("v_lshl_add_u32 v4, v11, 4, v4")
    a("v_lshlrev_b32 v7, 1, v10")
    a("s_cmp_eq_u32 s92, 1")
    a(f"s_cselect_b32 s44, s{P_BWQ}, s{P_WQ}")
    a(f"s_cselect_b32 s45, s{P_BWQ+1}, s{P_WQ+1}")
    a(f"s_mov_b32 s46, {448*8192:#x}")
    a("s_mov_b32 s47, 0x20000")
    a(f"s_cselect_b32 s64, s{P_BX}, s{P_AX}")
    a(f"s_cselect_b32 s65, s{P_BX+1}, s{P_AX+1}")
    a("s_mov_b32 s66, 1792")
    a("s_mov_b32 s67, 0x20000")
    a(f"s_mul_i32 s12, s3, {56*8192}")
    a("s_add_u32 s12, s12, s93")
    for i in range(7):
        a(f"buffer_load_dwordx4 {vr(W0+4*i)}, v4, s[44:47], s12 offen nt")
        if i < 6:
            a("s_add_u32 s12, s12, 0x10000")
    a("s_mul_i32 s12, s3, 112")
    for i in range(7):
        for b in range(2):
            a(f"buffer_load_ushort v{X0+2*i+b}, v7, s[64:67], s12 offen offset:{b*896 + i*16}")
    for i in range(EARLY):
        a_half_issue("K", i // 2, i % 2, i)
    for k in range(16):
        a(f"v_mov_b32 v{A0+k}, 0")
    a(f"s_waitcnt vmcnt({4*EARLY})")
    for i in range(7):
        for b in range(2):
            a(f"v_lshlrev_b32 v{8+b}, 16, v{X0+2*i+b}")
        for b in range(2):
            for w in range(4):
                a(f"v_dot2_f32_bf16 v{A0+8*b+2*w}, v{W0+4*i+w}, v{X0+2*i+b}, v{A0+8*b+2*w}")
                a(f"v_dot2_f32_bf16 v{A0+8*b+2*w+1}, v{W0+4*i+w}, v{8+b}, v{A0+8*b+2*w+1}")
    a("s_nop 2")
    red8(A0, 16, T0)
    a("s_lshl_b32 s12, s3, 9")
    a("v_lshlrev_b32 v8, 5, v11")
    a("v_add_u32 v8, s12, v8")
    a("s_mov_b64 exec, 0xff")
    for b in range(2):
        a(f"ds_write_b128 v8, {vr(A0+8*b)} offset:{LS_P + b*256}")
        a(f"ds_write_b128 v8, {vr(A0+4+8*b)} offset:{LS_P + b*256 + 16}")
    a("s_mov_b64 exec, -1")
    a("s_waitcnt lgkmcnt(0)")
    a("s_barrier")
    a("s_cmp_lg_u32 s3, 0")
    a("s_cbranch_scc1 L_S0_done")
    a("v_lshlrev_b32 v8, 2, v1")
    for w in range(8):
        for b in range(2):
            a(f"ds_read_b32 v{W0+8*b+w}, v8 offset:{LS_P + w*512 + b*256}")
    a("s_waitcnt lgkmcnt(0)")
    for st in (4, 2, 1):
        for b in range(2):
            for i in range(st):
                a(f"v_add_f32 v{W0+8*b+i}, v{W0+8*b+i}, v{W0+8*b+i+st}")
    a(f"v_cvt_pk_bf16_f32 v{W0}, v{W0}, v{W0+8}")
    a("v_lshlrev_b32 v8, 1, v1")
    a(f"ds_write_b16 v8, v{W0} offset:{LS_Q}")
    a(f"ds_write_b16_d16_hi v8, v{W0} offset:{LS_Q+128}")
    a("v_lshlrev_b32 v8, 4, v1")
    a("s_waitcnt lgkmcnt(0)")
    a("s_mov_b64 exec, 0xffff")
    a(f"ds_read_b128 {vr(W0)}, v8 offset:{LS_Q}")
    a("s_lshl_b32 s10, s92, 14")
    a("s_add_u32 s10, s10, s93")
    a(f"s_add_u32 s10, s10, {QV}")
    a("s_waitcnt lgkmcnt(0)")
    a(f"buffer_store_dwordx4 {vr(W0)}, v4, s[56:59], s10 offen sc1")
    a("s_mov_b64 exec, -1")
    get_nonce("s0")
    set_flag(0, 13)
    stamp(7)
    a("L_S0_done:")

def red8(base, n, tmp):
    for k in range(n):
        a(f"v_add_f32_dpp v{base+k}, v{base+k}, v{base+k} row_ror:8 row_mask:0xf bank_mask:0xf")
    for k in range(n):
        a(f"v_mov_b32 v{tmp+k}, v{base+k}")
    a("s_nop 1")
    for k in range(n):
        a(f"v_permlane16_swap_b32 v{base+k}, v{tmp+k}")
    a("s_nop 1")
    for k in range(n):
        a(f"v_add_f32 v{base+k}, v{base+k}, v{tmp+k}")
    for k in range(n):
        a(f"v_mov_b32 v{tmp+k}, v{base+k}")
    a("s_nop 1")
    for k in range(n):
        a(f"v_permlane32_swap_b32 v{base+k}, v{tmp+k}")
    a("s_nop 1")
    for k in range(n):
        a(f"v_add_f32 v{base+k}, v{base+k}, v{tmp+k}")

RING = [32, 64, 96]
QOP = 16
ACC = 128
SC = 192
PP = 216
DD = 228
PT = 236
LA_QPART = 0
LA_Q = 16384
LA_OPART = 17408
LA_STAT = 25600

SLPF = argval("SLPF", 4)
SLP = argval("SLP", 24)
SLP0 = argval("SLP0", 100)
SLPA = argval("SLPA", 40)
EARLY = argval("EARLY", 0)
WBF = argval("WBF", 8)
WIN = argval("WIN", 3)
NR = argval("NR", 6)
WB = argval("WB", 4)
def hbuf(i):
    return 32 + 16 * (i % NR)

def a_half_issue(kind, t, hh, idx):
    base = hbuf(idx)
    if kind == "K":
        a(f"s_add_u32 s10, s7, {t*8192 + hh*4096}")
        for j in range(4):
            a(f"buffer_load_dwordx4 {vr(base+j*4)}, v5, s[48:51], s10 offen offset:{j*128} nt")
    else:
        a(f"s_add_u32 s10, s7, {t*8192}")
        for i in range(4):
            a(f"buffer_load_dwordx4 {vr(base+i*4)}, v6, s[52:55], s10 offen offset:{i*512+hh*256} nt")

def a_setup():
    load_kernargs()
    a("s_lshl_b32 s7, s7, 13")
    a("s_lshl_b32 s8, s5, 4")
    a("s_add_u32 s8, s8, s4")
    a("s_lshl_b32 s9, s8, 21")
    a("v_and_b32 v8, 7, v2")
    a("v_lshlrev_b32 v5, 9, v8")
    a("v_lshrrev_b32 v8, 3, v2")
    a("v_lshl_add_u32 v5, v8, 6, v5")
    a("v_lshl_add_u32 v5, v3, 4, v5")
    a("v_lshlrev_b32 v6, 11, v3")
    a("v_lshl_add_u32 v6, v2, 4, v6")
    a("s_waitcnt lgkmcnt(0)")
    srd_off(48, P_K, P_K+1, 9, 1 << 21)
    srd_off(52, P_V, P_V+1, 9, 1 << 21)
    srd(56, P_WS, P_WS+1, WS_SIZE)
    srd(60, P_DBG, P_DBG+1, 256)
    a("s_mov_b32 s100, 0x05040100")
    a("s_mov_b32 s101, 0x07060302")
    a(f"s_mov_b32 s15, {C1:#x}")

def a_unit_head():
    a("L_A_head:")
    stamp(8)
    a("s_cmp_lg_u32 s3, 0")
    a("s_cbranch_scc1 L_A_pf")
    a("s_cmp_lt_u32 s6, 4")
    a("s_cbranch_scc0 L_ns_qa")
    a(f"s_sleep {SLP0}")
    a("L_ns_qa:")
    poll_loop("qa", 0, 4, 4, SLPA)
    a("v_lshlrev_b32 v8, 4, v1")
    a("s_lshl_b32 s10, s5, 13")
    a("s_lshl_b32 s11, s4, 9")
    a("s_add_u32 s10, s10, s11")
    a(f"s_add_u32 s10, s10, {QV}")
    a("s_mov_b64 exec, 0xffffffff")
    a(f"buffer_load_dwordx4 {vr(QOP)}, v8, s[56:59], s10 offen sc1")
    a("s_waitcnt vmcnt(0)")
    a(f"ds_write_b128 v8, {vr(QOP)} offset:{LA_Q}")
    a("v_mov_b32 v8, s94")
    a("v_mov_b32 v9, 0")
    a(f"ds_write_b32 v9, v8 offset:{LA_Q+512}")
    a("s_mov_b64 exec, -1")
    a("s_waitcnt lgkmcnt(0)")
    stamp(9)
    a("s_barrier")
    a("L_A_pf:")
    a("s_cmp_lt_u32 s6, 4")
    a("s_cbranch_scc1 L_A_pf2")
    for i in range(NR):
        if i == EARLY:
            a("L_A_pf2:")
        if i >= WIN:
            a(f"s_waitcnt vmcnt({4*(WIN-1)})")
        a_half_issue("K", i // 2, i % 2, i)
    a("s_cmp_eq_u32 s3, 0")
    a("s_cbranch_scc1 L_A_nb")
    a("s_barrier")
    a("L_A_nb:")
    a("v_and_b32 v8, 1, v2")
    a("v_lshlrev_b32 v8, 6, v8")
    a("v_lshl_add_u32 v8, v3, 4, v8")
    for j in range(4):
        a(f"ds_read_b128 {vr(QOP+4*j)}, v8 offset:{LA_Q + j*128}")
    a("s_waitcnt lgkmcnt(0)")
    stamp(10)

def cross_g(op, reg, tmp):
    a(f"v_mov_b32 v{tmp}, v{reg}")
    a("s_nop 1")
    a(f"v_permlane32_swap_b32 v{reg}, v{tmp}")
    a("s_nop 1")
    a(f"{op} v{reg}, v{reg}, v{tmp}")
    a(f"v_mov_b32 v{tmp}, v{reg}")
    a("s_nop 1")
    a(f"v_permlane16_swap_b32 v{reg}, v{tmp}")
    a("s_nop 1")
    a(f"{op} v{reg}, v{reg}, v{tmp}")

def a_unit_body(n):
    seq = [("K", t, hh) for t in range(n) for hh in range(2)] + [("V", t, hh) for t in range(n) for hh in range(2)]
    N = len(seq)
    for idx, (kind, t, hh) in enumerate(seq):
        base = hbuf(idx)
        if idx + NR < N:
            a(f"s_waitcnt vmcnt({4*(WIN-1)})")
        else:
            a(f"s_waitcnt vmcnt({4*min(WIN-1, N-1-idx)})")
        if kind == "K":
            u = hh
            for j in range(4):
                c = "0" if j == 0 else vr(DD+4*u)
                a(f"v_mfma_f32_16x16x32_bf16 {vr(DD+4*u)}, {vr(base+j*4)}, {vr(QOP+4*j)}, {c}")
            if idx + NR < N:
                a_half_issue(*seq[idx+NR], idx + NR)
            if u == 0:
                continue
            a("s_nop 7")
            a("s_nop 1")
            for i in range(4):
                a(f"v_permlane32_swap_b32 v{DD+i}, v{DD+4+i}")
            a("s_nop 0")
            for i in range(4):
                a(f"v_add_f32_dpp v{SC+4*t+i}, v{DD+4+i}, v{DD+i} quad_perm:[1,0,3,2] row_mask:0xf bank_mask:0xf")
            a(f"v_cvt_pk_bf16_f32 v8, v{SC+4*t}, v{SC+4*t+1}")
            a(f"v_cvt_pk_bf16_f32 v9, v{SC+4*t+2}, v{SC+4*t+3}")
            a(f"v_lshlrev_b32 v{SC+4*t}, 16, v8")
            a(f"v_and_b32 v{SC+4*t+1}, 0xffff0000, v8")
            a(f"v_lshlrev_b32 v{SC+4*t+2}, 16, v9")
            a(f"v_and_b32 v{SC+4*t+3}, 0xffff0000, v9")
            if t == n - 1:
                ns = 4 * n
                a(f"v_max_f32 v12, v{SC}, v{SC+1}")
                for k in range(2, ns, 2):
                    a(f"v_max3_f32 v12, v12, v{SC+k}, v{SC+k+1}")
                cross_g("v_max_f32", 12, 8)
                a("v_mul_f32 v9, s15, v12")
                for k in range(ns):
                    a(f"v_fma_f32 v{SC+k}, v{SC+k}, s15, -v9")
                for k in range(ns):
                    a(f"v_exp_f32 v{SC+k}, v{SC+k}")
                a("s_nop 0")
                a(f"v_add_f32 v13, v{SC}, v{SC+1}")
                for k in range(2, ns):
                    a(f"v_add_f32 v13, v13, v{SC+k}")
                for k in range(0, ns, 2):
                    a(f"v_cvt_pk_bf16_f32 v{PP+k//2}, v{SC+k}, v{SC+k+1}")
                cross_g("v_add_f32", 13, 8)
                stamp(11)
        else:
            hf = hh
            def mf(pw, pT):
                for e in range(2):
                    ac = ACC + 4 * (hf*8 + 2*pw + e)
                    c = "0" if t == 0 else vr(ac)
                    a(f"v_mfma_f32_16x16x16_bf16 {vr(ac)}, {vr(PP+2*t,2)}, {vr(pT+2*e,2)}, {c}")
            for w in range(4):
                R = [base + i*4 + w for i in range(4)]
                T = PT + 4 * w
                a(f"v_perm_b32 v{T}, v{R[1]}, v{R[0]}, s100")
                a(f"v_perm_b32 v{T+1}, v{R[3]}, v{R[2]}, s100")
                a(f"v_perm_b32 v{T+2}, v{R[1]}, v{R[0]}, s101")
                a(f"v_perm_b32 v{T+3}, v{R[3]}, v{R[2]}, s101")
                if w >= 1:
                    mf(w - 1, PT + 4 * (w - 1))
            a("s_nop 1")
            mf(3, PT + 12)
            if idx + NR < N:
                a_half_issue(*seq[idx+NR], idx + NR)
    a("s_branch L_A_tail")

def a_unit_tail():
    a("L_A_tail:")
    stamp(12)
    a("s_nop 7")
    a("s_nop 7")
    for k in range(16):
        a(f"v_mov_b32 v{32+k}, v{ACC+4*k}")
    a("s_lshl_b32 s10, s3, 10")
    a("v_lshlrev_b32 v8, 5, v2")
    a("v_add_u32 v8, s10, v8")
    a("s_lshl_b32 s11, s3, 3")
    a("v_mov_b32 v9, s11")
    a("s_mov_b64 exec, 0xffff")
    a(f"ds_write_b128 v8, {vr(32)} offset:{LA_OPART}")
    a(f"ds_write_b128 v8, {vr(36)} offset:{LA_OPART+16}")
    a(f"ds_write_b128 v8, {vr(40)} offset:{LA_OPART+512}")
    a(f"ds_write_b128 v8, {vr(44)} offset:{LA_OPART+528}")
    a("s_mov_b64 exec, 1")
    a(f"ds_write_b64 v9, v[12:13] offset:{LA_STAT}")
    a("s_mov_b64 exec, -1")
    a("s_waitcnt lgkmcnt(0)")
    a("s_barrier")
    a("s_cmp_ge_u32 s3, 4")
    a("s_cbranch_scc1 L_A_exit")
    a("v_mov_b32 v8, 0")
    for k in range(4):
        a(f"ds_read_b128 {vr(32+4*k)}, v8 offset:{LA_STAT+16*k}")
    a(f"ds_read_b32 v15, v8 offset:{LA_Q+512}")
    a("v_lshlrev_b32 v9, 2, v0")
    for w in range(8):
        a(f"ds_read_b32 v{48+w}, v9 offset:{LA_OPART+1024*w}")
    a("s_waitcnt lgkmcnt(0)")
    a("v_max_f32 v12, v32, v34")
    a("v_max3_f32 v12, v12, v36, v38")
    a("v_max3_f32 v12, v12, v40, v42")
    a("v_max3_f32 v12, v12, v44, v46")
    for w in range(8):
        a(f"v_sub_f32 v{32+2*w}, v{32+2*w}, v12")
        a(f"v_mul_f32 v{32+2*w}, s15, v{32+2*w}")
        a(f"v_exp_f32 v{32+2*w}, v{32+2*w}")
    a("s_nop 0")
    a("v_mul_f32 v13, v32, v33")
    a("v_mul_f32 v14, v32, v48")
    for w in range(1, 8):
        a(f"v_fmac_f32 v13, v{32+2*w}, v{33+2*w}")
        a(f"v_fmac_f32 v14, v{32+2*w}, v{48+w}")
    a("s_mul_i32 s10, s8, 6")
    a("s_add_u32 s10, s10, s6")
    a("s_lshl_b32 s11, s10, 12")
    a(f"s_add_u32 s11, s11, {A_PART}")
    a("v_lshlrev_b32 v9, 3, v0")
    a("buffer_store_dwordx2 v[14:15], v9, s[56:59], s11 offen sc1")
    a("s_cmp_lg_u32 s3, 0")
    a("s_cbranch_scc1 L_A_exit")
    a("v_mov_b32 v32, v12")
    a("v_mov_b32 v33, v15")
    a("v_mov_b32 v34, v13")
    a("v_mov_b32 v35, v15")
    a("s_mov_b64 exec, 1")
    a("buffer_store_dwordx4 v[32:35], v8, s[56:59], s11 offen offset:2048 sc1")
    a("s_mov_b64 exec, -1")
    stamp(13)
    a("L_A_exit:")
    a("s_cmp_lt_u32 s6, 4")
    a("s_cbranch_scc1 L_end")
    a("s_branch L_F1")

def main_kernel():
    a(f".globl {KN}\n.p2align 8\n.type {KN},@function\n{KN}:")
    a("s_cmp_ge_u32 s2, 256")
    a("s_cbranch_scc1 L_exit")
    a("v_lshrrev_b32 v8, 6, v0")
    a("v_and_b32 v1, 63, v0")
    a("v_readfirstlane_b32 s3, v8")
    a("v_and_b32 v2, 15, v1")
    a("v_lshrrev_b32 v3, 4, v1")
    stamp_init()
    a("s_and_b32 s8, s2, 7")
    a("s_lshr_b32 s9, s2, 3")
    a("s_cmp_lt_u32 s9, 8")
    a("s_cbranch_scc1 L_B1")
    a("s_cmp_lt_u32 s9, 16")
    a("s_cbranch_scc1 L_B2")
    a("s_sub_u32 s9, s9, 16")
    a("s_lshl_b32 s13, s9, 3")
    a("s_add_u32 s13, s13, s8")
    a("s_lshr_b32 s4, s9, 3")
    a("s_lshl_b32 s10, s8, 1")
    a("s_add_u32 s4, s4, s10")
    a("s_lshr_b32 s5, s9, 2")
    a("s_and_b32 s5, s5, 1")
    a("s_and_b32 s6, s9, 3")
    a(f"s_mul_i32 s7, s6, {TA0*8+TAK}")
    a(f"s_mul_i32 s10, s3, {TA0}")
    a("s_add_u32 s7, s7, s10")
    wave_split(TA0, TAK)
    a_setup()
    s0_task()
    a_unit_head()
    ns = sorted(set([TA0, TB0] + ([TA0+1] if TAK else []) + ([TB0+1] if TBK else [])))
    for n in ns[:-1]:
        a(f"s_cmp_eq_u32 s14, {n}")
        a(f"s_cbranch_scc1 L_A{n}")
    a_unit_body(ns[-1])
    for n in ns[:-1]:
        a(f"L_A{n}:")
        a_unit_body(n)
    a_unit_tail()
    import gen_b
    gen_b.emit(sys.modules[__name__])
    a("L_end:")
    stamp_dump()
    a("L_exit:")
    a("s_endpgm")

def kd(name, vgpr, sgpr=102):
    a(f""".amdhsa_kernel {name}
  .amdhsa_next_free_vgpr {vgpr}
  .amdhsa_next_free_sgpr {sgpr}
  .amdhsa_accum_offset {(vgpr+3)//4*4}
  .amdhsa_group_segment_fixed_size 0
  .amdhsa_kernarg_size 112
  .amdhsa_user_sgpr_count 2
  .amdhsa_user_sgpr_kernarg_segment_ptr 1
  .amdhsa_system_sgpr_workgroup_id_x 1
.end_amdhsa_kernel""")

L2_O = 0
L2_RED = 2048
L2_FLAG = 18432
LDS_K2 = 18688

def final_kernel():
    a(".globl k2_kernel\n.p2align 8\n.type k2_kernel,@function\nk2_kernel:")
    a("s_cmp_ge_u32 s2, 224")
    a("s_cbranch_scc1 L2_exit")
    if STAMPS:
        a("s_memrealtime s[64:65]")
    load_kernargs()
    a("v_lshrrev_b32 v8, 6, v0")
    a("v_and_b32 v1, 63, v0")
    a("v_readfirstlane_b32 s3, v8")
    a("s_and_b32 s4, s2, 15")
    a("s_lshr_b32 s5, s2, 4")
    a("s_cmp_ge_u32 s5, 7")
    a("s_cselect_b32 s6, 1, 0")
    a("s_mul_i32 s7, s6, 7")
    a("s_sub_u32 s7, s5, s7")
    a(f"s_mov_b32 s15, {C1:#x}")
    a("s_waitcnt lgkmcnt(0)")
    a("s_cmp_eq_u32 s6, 1")
    a(f"s_cselect_b32 s44, s{P_BWO}, s{P_WO}")
    a(f"s_cselect_b32 s45, s{P_BWO+1}, s{P_WO+1}")
    a(f"s_mov_b32 s46, {4096*896:#x}")
    a("s_mov_b32 s47, 0x20000")
    srd(56, P_WS, P_WS+1, WS_SIZE)
    srd(60, P_DBG, P_DBG+1, 256)
    srd(48, P_OUT, P_OUT+1, 1792*2)
    a("v_lshrrev_b32 v2, 3, v1")
    a("v_and_b32 v3, 7, v1")
    a("s_movk_i32 s10, 896")
    a("v_mul_lo_u32 v4, v2, s10")
    a("v_lshl_add_u32 v4, v3, 4, v4")
    a("s_lshl_b32 s10, s4, 8")
    a("s_lshl_b32 s11, s3, 6")
    a("s_add_u32 s10, s10, s11")
    a("s_mul_i32 s10, s10, 896")
    a("s_lshl_b32 s11, s7, 7")
    a("s_add_u32 s10, s10, s11")
    for i in range(8):
        a(f"buffer_load_dwordx4 {vr(32+4*i)}, v4, s[44:47], s10 offen nt")
        if i < 7:
            a(f"s_add_u32 s10, s10, {8*896}")
    a("v_lshlrev_b32 v5, 2, v0")
    a("s_cmp_eq_u32 s6, 1")
    a("s_cbranch_scc1 L2_B")
    a("s_mul_i32 s10, s4, 6")
    a("s_lshl_b32 s11, s10, 10")
    a(f"s_add_u32 s11, s11, {A_PART}")
    a("s_lshl_b32 s12, s10, 3")
    a(f"s_add_u32 s12, s12, {A_STAT}")
    a("v_mov_b32 v6, 0")
    for b in range(2):
        for s in range(6):
            a(f"s_add_u32 s13, s11, {b*96*1024 + s*1024}")
            a(f"buffer_load_dword v{64+b*6+s}, v5, s[56:59], s13 offen")
        a(f"s_add_u32 s13, s12, {b*96*8}")
        for k in range(3):
            a(f"buffer_load_dwordx4 {vr(80+b*12+4*k)}, v6, s[56:59], s13 offen offset:{16*k}")
    a("s_waitcnt vmcnt(0)")
    for b in range(2):
        st = 80 + b*12
        a(f"v_max_f32 v8, v{st}, v{st+2}")
        a(f"v_max3_f32 v8, v8, v{st+4}, v{st+6}")
        a(f"v_max3_f32 v8, v8, v{st+8}, v{st+10}")
        for s in range(6):
            a(f"v_sub_f32 v{st+2*s}, v{st+2*s}, v8")
            a(f"v_mul_f32 v{st+2*s}, s15, v{st+2*s}")
            a(f"v_exp_f32 v{st+2*s}, v{st+2*s}")
        a("s_nop 0")
        a(f"v_mul_f32 v9, v{st}, v{st+1}")
        a(f"v_mul_f32 v{10+b}, v{st}, v{64+b*6}")
        for s in range(1, 6):
            a(f"v_fmac_f32 v9, v{st+2*s}, v{st+2*s+1}")
            a(f"v_fmac_f32 v{10+b}, v{st+2*s}, v{64+b*6+s}")
        a("v_rcp_f32 v12, v9")
        a("s_nop 0")
        a("v_fma_f32 v13, -v9, v12, 1.0")
        a("v_fmac_f32 v12, v13, v12")
        a(f"v_mul_f32 v{10+b}, v{10+b}, v12")
    a("s_branch L2_join")
    a("L2_B:")
    a("s_lshl_b32 s11, s4, 13")
    a(f"s_add_u32 s11, s11, {CTX_P}")
    for qt in range(4):
        a(f"s_add_u32 s13, s11, {qt*2048}")
        for b in range(2):
            a(f"buffer_load_dword v{64+b*4+qt}, v5, s[56:59], s13 offen offset:{b*1024}")
    a("s_waitcnt vmcnt(0)")
    for b in range(2):
        a(f"v_add_f32 v{10+b}, v{64+b*4}, v{65+b*4}")
        a(f"v_add_f32 v12, v{66+b*4}, v{67+b*4}")
        a(f"v_add_f32 v{10+b}, v{10+b}, v12")
    a("L2_join:")
    if STAMPS:
        a("s_memrealtime s[66:67]")
    a("v_cvt_pk_bf16_f32 v12, v10, v11")
    a("v_lshlrev_b32 v10, 16, v12")
    a("v_and_b32 v11, 0xffff0000, v12")
    a("v_lshlrev_b32 v8, 3, v0")
    a(f"ds_write_b64 v8, v[10:11] offset:{L2_O}")
    a("s_waitcnt lgkmcnt(0)")
    a("s_barrier")
    a("s_lshl_b32 s10, s3, 9")
    a("v_lshlrev_b32 v8, 3, v2")
    a("v_add_u32 v8, s10, v8")
    for i in range(8):
        a(f"ds_read_b64 v[{64+2*i}:{65+2*i}], v8 offset:{L2_O + i*64}")
    for k in range(16):
        a(f"v_mov_b32 v{96+k}, 0")
    a("s_waitcnt lgkmcnt(0)")
    for i in range(8):
        for w in range(4):
            a(f"v_lshlrev_b32 v8, 16, v{32+4*i+w}")
            a(f"v_and_b32 v9, 0xffff0000, v{32+4*i+w}")
            for b in range(2):
                a(f"v_fmac_f32 v{96+8*b+2*w}, v8, v{64+2*i+b}")
                a(f"v_fmac_f32 v{96+8*b+2*w+1}, v9, v{64+2*i+b}")
    a("v_lshlrev_b32 v8, 6, v0")
    for k in range(4):
        a(f"ds_write_b128 v8, {vr(96+4*k)} offset:{L2_RED+16*k}")
    a("s_waitcnt lgkmcnt(0)")
    a("s_barrier")
    a("s_cmp_ge_u32 s3, 2")
    a("s_cbranch_scc1 L2_wait")
    a("v_lshrrev_b32 v8, 3, v1")
    a("v_lshlrev_b32 v8, 6, v8")
    a("v_lshl_add_u32 v8, v3, 2, v8")
    a("s_lshl_b32 s10, s3, 5")
    a("v_add_u32 v8, s10, v8")
    for j in range(32):
        a(f"ds_read_b32 v{32+j}, v8 offset:{L2_RED + j*512}")
    a("s_waitcnt lgkmcnt(0)")
    for st in (16, 8, 4, 2, 1):
        for i in range(st):
            a(f"v_add_f32 v{32+i}, v{32+i}, v{32+i+st}")
    a("s_lshl_b32 s10, s5, 4")
    a("s_add_u32 s10, s10, s4")
    a("s_lshl_b32 s10, s10, 9")
    a(f"s_add_u32 s10, s10, {OUT_P}")
    a("buffer_store_dword v32, v5, s[56:59], s10 offen sc1")
    a("s_waitcnt vmcnt(0)")
    a("L2_wait:")
    if STAMPS:
        a("s_memrealtime s[68:69]")
    a("s_barrier")
    a("s_cmp_lg_u32 s3, 0")
    a("s_cbranch_scc1 L2_wait2")
    a("v_mov_b32 v8, 1")
    a("s_lshl_b32 s10, s5, 2")
    a("v_mov_b32 v9, s10")
    a("s_mov_b64 exec, 1")
    a("buffer_atomic_add v8, v9, s[60:63], 0 offen sc0")
    a("s_waitcnt vmcnt(0)")
    a("v_mov_b32 v9, 0")
    a(f"ds_write_b32 v9, v8 offset:{L2_FLAG}")
    a("s_waitcnt lgkmcnt(0)")
    a("s_mov_b64 exec, -1")
    a("L2_wait2:")
    a("s_barrier")
    a("s_cmp_ge_u32 s3, 2")
    a("s_cbranch_scc1 L2_end")
    a("v_mov_b32 v9, 0")
    a(f"ds_read_b32 v8, v9 offset:{L2_FLAG}")
    a("s_waitcnt lgkmcnt(0)")
    a("v_readfirstlane_b32 s10, v8")
    a("s_cmp_lg_u32 s10, 15")
    a("s_cbranch_scc1 L2_end")
    a("s_lshl_b32 s10, s5, 13")
    a(f"s_add_u32 s10, s10, {OUT_P}")
    for h in range(16):
        if h == 8:
            a("s_add_u32 s10, s10, 0x1000")
        a(f"buffer_load_dword v{32+h}, v5, s[56:59], s10 offen offset:{(h%8)*512} sc1")
    a("s_waitcnt vmcnt(0)")
    for st in (8, 4, 2, 1):
        for i in range(st):
            a(f"v_add_f32 v{32+i}, v{32+i}, v{32+i+st}")
    a("v_cvt_pk_bf16_f32 v32, v32, v32")
    a("s_mul_i32 s10, s3, 896")
    a("s_mul_i32 s11, s6, 448")
    a("s_add_u32 s10, s10, s11")
    a("s_lshl_b32 s11, s7, 6")
    a("s_add_u32 s10, s10, s11")
    a("s_lshl_b32 s10, s10, 1")
    a("v_lshlrev_b32 v8, 1, v1")
    a("buffer_store_short v32, v8, s[48:51], s10 offen")
    a("L2_end:")
    if STAMPS:
        a("s_mov_b64 exec, -1")
        a("s_cmp_lg_u32 s3, 0")
        a("s_cbranch_scc1 L2_exit")
        a("s_waitcnt vmcnt(0)")
        a("s_memrealtime s[70:71]")
        a("s_waitcnt lgkmcnt(0)")
        for k in range(8):
            a(f"v_mov_b32 v{32+k}, s{64+k}")
        a("v_mov_b32 v8, 0")
        a("s_lshl_b32 s10, s2, 5")
        a(f"s_add_u32 s10, s10, {STAMP + 0x10000}")
        a("s_mov_b64 exec, 1")
        a("buffer_store_dwordx4 v[32:35], v8, s[56:59], s10 offen")
        a("buffer_store_dwordx4 v[36:39], v8, s[56:59], s10 offen offset:16")
    a("L2_exit:")
    a("s_endpgm")

def main():
    hdr = open("concat_heads__mha_block_cached__compressed_kv_cla__decode.s.ref").read().split("; Override launch geometry")[0]
    a(hdr.rstrip())
    a(f"; @launch grid=(256,1,1) block=(512,1,1) lds={LDS_K1}")
    a('.amdgcn_target "amdgcn-amd-amdhsa--gfx950"')
    a(".text")
    main_kernel()
    a('.section .rodata,"a"')
    a(".p2align 6")
    kd(KN, 256)
    print("\n".join(OUT))

if __name__ == "__main__":
    sys.path.insert(0, "scratch")
    sys.modules["gen"] = sys.modules[__name__]
    main()
```

```python
def emit(g):
    a, vr, srd = g.a, g.vr, g.srd

    poll = g.poll

    def signal(off, tag, n=0):
        a(f"s_waitcnt vmcnt({n})")
        g.stamp(18)
        a("s_barrier")
        g.stamp(19)
        a("s_cmp_lg_u32 s3, 0")
        a(f"s_cbranch_scc1 L_sg_{tag}")
        g.set_flag(off, 9)
        if g.STAMPS:
            a("s_waitcnt vmcnt(0)")
            g.stamp(20)
        a(f"L_sg_{tag}:")

    LB_Q = 32768
    LB_QA = 33792
    WUK = 32
    QOP = 16
    DD = 96
    SS = 112
    a("L_B1:")
    g.load_kernargs()
    a("s_lshr_b32 s4, s9, 2")
    a("s_lshl_b32 s10, s8, 1")
    a("s_add_u32 s4, s4, s10")
    a("s_and_b32 s14, s9, 3")
    a("v_and_b32 v8, 7, v2")
    a("v_lshlrev_b32 v5, 13, v8")
    a("v_lshrrev_b32 v8, 3, v2")
    a("v_lshl_add_u32 v5, v8, 6, v5")
    a("v_lshl_add_u32 v5, v3, 4, v5")
    a("s_lshl_b32 s10, s14, 8")
    a("s_lshl_b32 s11, s3, 5")
    a("s_add_u32 s10, s10, s11")
    a("s_lshl_b32 s10, s10, 13")
    a("s_lshl_b32 s11, s4, 9")
    a("s_add_u32 s10, s10, s11")
    a("s_waitcnt lgkmcnt(0)")
    srd(48, g.P_WUK, g.P_WUK+1, 1024*8192)
    srd(56, g.P_WS, g.P_WS+1, g.WS_SIZE)
    srd(60, g.P_DBG, g.P_DBG+1, 256)
    a("s_or_b32 s11, s2, s3")
    a("s_cmp_lg_u32 s11, 0")
    a("s_cbranch_scc1 L_B1_nn")
    a("s_memrealtime s[12:13]")
    a("s_waitcnt lgkmcnt(0)")
    a("s_or_b32 s12, s12, 1")
    a("v_mov_b32 v10, s12")
    a("v_mov_b32 v11, s13")
    a("v_mov_b32 v9, 0")
    a("s_mov_b64 exec, 1")
    a("buffer_store_dwordx2 v[10:11], v9, s[60:63], 0 offen sc1")
    a("s_mov_b64 exec, -1")
    a("L_B1_nn:")
    for u in range(4):
        for j in range(4):
            if u*4+j >= g.WB:
                a(f"s_waitcnt vmcnt({g.WB-1})")
            a(f"buffer_load_dwordx4 {vr(WUK+(u*4+j)*4)}, v5, s[48:51], s10 offen offset:{j*128} nt")
        if u < 3:
            a("s_add_u32 s10, s10, 0x10000")
    g.stamp(0)
    poll(64, 4, "qb", 4, True)
    a("v_bfe_u32 v8, v2, 1, 1")
    a("v_lshlrev_b32 v8, 13, v8")
    a("v_and_b32 v9, 1, v2")
    a("v_lshl_add_u32 v8, v9, 6, v8")
    a("v_lshl_add_u32 v8, v3, 4, v8")
    a("s_lshl_b32 s10, s4, 9")
    a(f"s_add_u32 s10, s10, {g.QV + 16384}")
    for j in range(4):
        a(f"buffer_load_dwordx4 {vr(QOP+4*j)}, v8, s[56:59], s10 offen offset:{j*128} sc1")
    a("s_waitcnt vmcnt(0)")
    g.stamp(1)
    for j in range(4):
        for u in range(4):
            c = "0" if j == 0 else vr(DD+4*u)
            a(f"v_mfma_f32_16x16x32_bf16 {vr(DD+4*u)}, {vr(WUK+(u*4+j)*4)}, {vr(QOP+4*j)}, {c}")
    a("s_nop 7")
    a("s_nop 1")
    for p in range(2):
        for i in range(4):
            a(f"v_permlane32_swap_b32 v{DD+8*p+i}, v{DD+8*p+4+i}")
    a("s_nop 0")
    for p in range(2):
        for i in range(4):
            a(f"v_add_f32_dpp v{SS+4*p+i}, v{DD+8*p+4+i}, v{DD+8*p+i} quad_perm:[1,0,3,2] row_mask:0xf bank_mask:0xf")
    for p in range(2):
        a(f"v_cvt_pk_bf16_f32 v{32+2*p}, v{SS+4*p}, v{SS+4*p+1}")
        a(f"v_cvt_pk_bf16_f32 v{33+2*p}, v{SS+4*p+2}, v{SS+4*p+3}")
        for i in range(4):
            if i % 2 == 0:
                a(f"v_lshlrev_b32 v8, 16, v{32+2*p+i//2}")
            else:
                a(f"v_and_b32 v8, 0xffff0000, v{32+2*p+i//2}")
            a(f"v_sub_f32 v{SS+4*p+i}, v{SS+4*p+i}, v8")
        a(f"v_cvt_pk_bf16_f32 v{36+2*p}, v{SS+4*p}, v{SS+4*p+1}")
        a(f"v_cvt_pk_bf16_f32 v{37+2*p}, v{SS+4*p+2}, v{SS+4*p+3}")
    a("v_bfe_u32 v8, v2, 1, 1")
    a("v_lshlrev_b32 v8, 10, v8")
    a("v_lshl_add_u32 v8, v3, 3, v8")
    a("s_lshl_b32 s10, s3, 6")
    a("v_add_u32 v8, s10, v8")
    a("s_mov_b32 exec_lo, 0x00050005")
    a("s_mov_b32 exec_hi, 0x00050005")
    for p in range(2):
        for hl in range(2):
            a(f"ds_write_b64 v8, {vr(32+4*hl+2*p,2)} offset:{LB_QA + hl*512 + p*32}")
    a("s_mov_b64 exec, -1")
    a("s_waitcnt lgkmcnt(0)")
    a("s_barrier")
    a("s_cmp_lg_u32 s3, 0")
    a("s_cbranch_scc1 L_B1_done")
    a("v_lshlrev_b32 v8, 4, v1")
    a(f"ds_read_b128 {vr(32)}, v8 offset:{LB_QA}")
    a(f"ds_read_b128 {vr(36)}, v8 offset:{LB_QA+1024}")
    a("v_lshrrev_b32 v8, 5, v1")
    a("v_lshlrev_b32 v8, 15, v8")
    a("v_and_b32 v9, 31, v1")
    a("v_lshl_add_u32 v8, v9, 4, v8")
    a("s_lshl_b32 s10, s4, 11")
    a("s_lshl_b32 s11, s14, 9")
    a("s_add_u32 s10, s10, s11")
    a(f"s_add_u32 s10, s10, {g.QABS}")
    a("s_add_u32 s11, s10, 0x10000")
    a("s_waitcnt lgkmcnt(0)")
    a(f"buffer_store_dwordx4 {vr(32)}, v8, s[56:59], s10 offen sc1")
    a(f"buffer_store_dwordx4 {vr(36)}, v8, s[56:59], s11 offen sc1")
    a("s_waitcnt vmcnt(0)")
    a("s_lshl_b32 s12, s4, 2")
    a("s_add_u32 s12, s12, s14")
    g.set_flag(128, 12)
    g.stamp(2)
    a("L_B1_done:")
    a("s_lshl_b32 s96, s4, 2")
    a("s_add_u32 s96, s96, s14")
    if not g.FWLATE:
        fw_dma(g, g.WBF)
    a("s_and_b32 s8, s2, 7")
    a("s_lshr_b32 s9, s2, 3")
    a("s_lshl_b32 s10, s9, 1")
    a("s_bfe_u32 s11, s8, 0x10001")
    a("s_add_u32 s10, s10, s11")
    a("s_lshl_b32 s10, s10, 1")
    a("s_lshr_b32 s11, s8, 2")
    a("s_xor_b32 s11, s11, 1")
    a("s_add_u32 s10, s10, s11")
    a("s_and_b32 s4, s10, 15")
    a("s_lshr_b32 s5, s10, 4")
    a("s_and_b32 s6, s8, 1")
    a(f"s_mul_i32 s7, s6, {g.TB}")
    a(f"s_add_u32 s7, s7, {4*g.TA}")
    a(f"s_mul_i32 s10, s3, {1 if g.ILV else g.TB0}")
    a("s_add_u32 s7, s7, s10")
    a("s_add_u32 s6, s6, 4")
    g.wave_split(g.TB0, g.TBK)
    g.a_setup()
    a("s_branch L_A_head")

    LB_SC = 131072
    LB_CL = 139264
    LB_TAG = 141312
    CK = 128
    QO = 32
    DQ = 64
    SC = 80
    PP = 112
    ID = 16
    a("L_B2:")
    g.STV = 28
    g.load_kernargs()
    a("s_sub_u32 s9, s9, 8")
    a("s_lshl_b32 s9, s9, 3")
    a("s_add_u32 s9, s9, s8")
    a("s_lshr_b32 s5, s9, 5")
    a("s_and_b32 s6, s9, 31")
    a("s_lshr_b32 s4, s9, 2")
    a("s_and_b32 s14, s9, 3")
    a(f"s_mov_b32 s15, {g.C1:#x}")
    a("s_waitcnt lgkmcnt(0)")
    srd(44, g.P_CKV, g.P_CKV+1, 1 << 24)
    srd(48, g.P_WUV, g.P_WUV+1, 1024*8192)
    srd(56, g.P_WS, g.P_WS+1, g.WS_SIZE)
    srd(60, g.P_DBG, g.P_DBG+1, 256)
    g.stamp(0)
    a("v_and_b32 v8, 7, v2")
    a("v_lshlrev_b32 v5, 11, v8")
    a("v_lshrrev_b32 v8, 3, v2")
    a("v_lshl_add_u32 v5, v8, 6, v5")
    a("v_lshl_add_u32 v5, v3, 4, v5")
    a("s_lshl_b32 s10, s9, 18")
    a("s_lshl_b32 s11, s3, 8")
    a("s_add_u32 s10, s10, s11")
    for u in range(16):
        for j in range(2):
            if u*2+j >= g.WB:
                a(f"s_waitcnt vmcnt({g.WB-1})")
            a(f"buffer_load_dwordx4 {vr(CK+(u*2+j)*4)}, v5, s[44:47], s10 offen offset:{j*128} nt")
        if u < 15:
            a("s_add_u32 s10, s10, 0x4000")
    a("v_lshrrev_b32 v7, 5, v1")
    a("v_lshlrev_b32 v4, 13, v7")
    a("v_and_b32 v8, 31, v1")
    a("v_lshl_add_u32 v4, v8, 4, v4")
    a("s_lshl_b32 s10, s14, 8")
    a("s_lshl_b32 s11, s3, 5")
    a("s_add_u32 s10, s10, s11")
    a("s_lshl_b32 s10, s10, 13")
    a("s_lshl_b32 s11, s4, 9")
    a("s_add_u32 s10, s10, s11")
    a("s_lshl_b32 s11, s3, 13")
    a("s_add_u32 s11, s11, 0x10000")
    for i in range(8):
        a("s_mov_b32 m0, s11")
        a(f"s_waitcnt vmcnt({g.WB-1})")
        a("buffer_load_dwordx4 v4, s[48:51], s10 offen nt lds")
        a("s_add_u32 s10, s10, 0x4000")
        if i < 7:
            a("s_add_u32 s11, s11, 0x400")
    a("s_mov_b32 s97, s10")
    a("v_lshrrev_b32 v8, 3, v2")
    a("v_sub_u32 v8, v3, v8")
    a("v_lshlrev_b32 v8, 2, v8")
    a("v_bfe_u32 v9, v2, 1, 2")
    a("v_add_u32 v8, v8, v9")
    a("v_and_b32 v9, 1, v2")
    a("v_lshlrev_b32 v9, 4, v9")
    a("v_mov_b32 v10, 0x3f80")
    a("v_lshlrev_b32 v9, v9, v10")
    for sel in range(2):
        for w4 in range(4):
            a(f"v_cmp_eq_u32 vcc, {sel*8+w4}, v8")
            a("s_nop 1")
            a(f"v_cndmask_b32 v{ID+4*sel+w4}, 0, v9, vcc")
    a("s_waitcnt lgkmcnt(0)")
    poll(128, 64, "q", None, True)
    a("s_cmp_lg_u32 s3, 0")
    a("s_cbranch_scc1 L_B2_nt")
    a("v_mov_b32 v8, s94")
    a(f"v_mov_b32 v9, {LB_TAG}")
    a("ds_write_b32 v9, v8")
    a("L_B2_nt:")
    g.stamp(1)
    a("v_lshrrev_b32 v8, 1, v2")
    a("v_lshlrev_b32 v6, 11, v8")
    a("v_and_b32 v8, 1, v2")
    a("v_lshl_add_u32 v6, v8, 6, v6")
    a("v_lshl_add_u32 v6, v3, 4, v6")
    a("s_lshl_b32 s10, s5, 16")
    a("s_lshl_b32 s11, s3, 8")
    a("s_add_u32 s10, s10, s11")
    a(f"s_add_u32 s10, s10, {g.QABS}")
    for G in range(2):
        for hl in range(2):
            a(f"s_add_u32 s11, s10, {hl*32768 + G*16384}")
            for j2 in range(2):
                a(f"buffer_load_dwordx4 {vr(QO+((j2*2+G)*2+hl)*4)}, v6, s[56:59], s11 offen offset:{j2*128} sc1")
    a("v_and_b32 v8, 1, v1")
    a("v_cmp_eq_u32 s[98:99], 1, v8")
    a("v_lshlrev_b32 v11, 4, v1")
    a("s_lshl_b32 s11, s3, 13")
    a("v_add_u32 v15, s11, v11")
    a("s_waitcnt vmcnt(0)")
    g.stamp(2)
    for T in range(8):
        for j2 in range(2):
            for hl in range(2):
                for G in range(2):
                    for uu in range(2):
                        d = DQ + (G*2+uu)*4
                        c = "0" if (j2 == 0 and hl == 0) else vr(d)
                        a(f"v_mfma_f32_16x16x32_bf16 {vr(d)}, {vr(CK+((2*T+uu)*2+j2)*4)}, {vr(QO+((j2*2+G)*2+hl)*4)}, {c}")
        a("s_nop 7")
        a("s_nop 1")
        for G in range(2):
            for i in range(4):
                a(f"v_permlane32_swap_b32 v{DQ+G*8+i}, v{DQ+G*8+4+i}")
        a("s_nop 0")
        for i in range(4):
            a(f"v_add_f32_dpp v{DQ+i}, v{DQ+4+i}, v{DQ+i} quad_perm:[1,0,3,2] row_mask:0xf bank_mask:0xf")
            a(f"v_add_f32_dpp v{DQ+12+i}, v{DQ+8+i}, v{DQ+12+i} quad_perm:[1,0,3,2] row_mask:0xf bank_mask:0xf")
        for i in range(4):
            a(f"v_cndmask_b32 v{SC+4*T+i}, v{DQ+i}, v{DQ+12+i}, s[98:99]")
        a(f"ds_write_b128 v15, {vr(SC+4*T)} offset:{T*1024}")
    g.stamp(13)
    a("s_waitcnt lgkmcnt(0)")
    a("s_barrier")
    a("s_lshl_b32 s11, s3, 10")
    a("v_add_u32 v15, s11, v11")
    for w in range(8):
        a(f"ds_read_b128 {vr(SC+4*w)}, v15 offset:{w*8192}")
    a("s_waitcnt lgkmcnt(0)")
    for st in (4, 2, 1):
        for w in range(st):
            for i in range(4):
                a(f"v_add_f32 v{SC+4*w+i}, v{SC+4*w+i}, v{SC+4*(w+st)+i}")
    a(f"v_add_u32 v15, {LB_SC}, v15")
    a(f"ds_write_b128 v15, {vr(SC)}")
    a(f"v_add_u32 v11, {LB_SC}, v11")
    a("s_waitcnt lgkmcnt(0)")
    a("s_barrier")
    g.stamp(15)
    for T in range(8):
        a(f"ds_read_b128 {vr(SC+4*T)}, v11 offset:{T*1024}")
    a("s_waitcnt lgkmcnt(0)")
    a(f"v_max_f32 v12, v{SC}, v{SC+1}")
    for k in range(2, 32, 2):
        a(f"v_max3_f32 v12, v12, v{SC+k}, v{SC+k+1}")
    g.cross_g("v_max_f32", 12, 8)
    a("v_mul_f32 v9, s15, v12")
    for k in range(32):
        a(f"v_fma_f32 v{SC+k}, v{SC+k}, s15, -v9")
    for k in range(32):
        a(f"v_exp_f32 v{SC+k}, v{SC+k}")
    a("s_nop 0")
    a(f"v_add_f32 v13, v{SC}, v{SC+1}")
    for k in range(2, 32):
        a(f"v_add_f32 v13, v13, v{SC+k}")
    for k in range(0, 32, 2):
        a(f"v_cvt_pk_bf16_f32 v{PP+k//2}, v{SC+k}, v{SC+k+1}")
    g.cross_g("v_add_f32", 13, 8)
    a("v_lshrrev_b32 v14, 1, v2")
    a("v_and_b32 v8, 1, v2")
    a("v_lshl_add_u32 v14, v8, 3, v14")
    a("s_cmp_lg_u32 s3, 0")
    a("s_cbranch_scc1 L_B2_nostat")
    a("v_lshlrev_b32 v8, 3, v14")
    a("s_lshl_b32 s10, s9, 7")
    a(f"s_add_u32 s10, s10, {g.B_STAT}")
    a("s_mov_b64 exec, 0xffff")
    a("buffer_store_dwordx2 v[12:13], v8, s[56:59], s10 offen sc1")
    a("s_mov_b64 exec, -1")
    a("L_B2_nostat:")
    g.stamp(16)
    AC = 32
    DT = [64, 72, 80, 88]
    XY = [96, 100, 104, 108]
    groups = [(T, j2, sel) for T in range(8) for j2 in range(2) for sel in range(2)]
    NG = len(groups)
    def st1(n):
        T, j2, sel = groups[n]
        d = DT[n % 4]
        for uu in range(2):
            a(f"v_mfma_f32_16x16x32_bf16 {vr(d+4*uu)}, {vr(CK+((2*T+uu)*2+j2)*4)}, {vr(ID+4*sel)}, 0")
    def st2(n):
        d = DT[n % 4]; x = XY[n % 4]
        a(f"v_cvt_pk_bf16_f32 v{x}, v{d}, v{d+1}")
        a(f"v_cvt_pk_bf16_f32 v{x+1}, v{d+2}, v{d+3}")
        a(f"v_cvt_pk_bf16_f32 v{x+2}, v{d+4}, v{d+5}")
        a(f"v_cvt_pk_bf16_f32 v{x+3}, v{d+6}, v{d+7}")
    def st3(n):
        x = XY[n % 4]
        a(f"v_permlane32_swap_b32 v{x}, v{x+2}")
        a(f"v_permlane32_swap_b32 v{x+1}, v{x+3}")
    def st4(n):
        T, j2, sel = groups[n]
        x = XY[n % 4]
        for k in range(2):
            ac = AC + 4 * (j2*4 + 2*k + sel)
            c = "0" if T == 0 else vr(ac)
            a(f"v_mfma_f32_16x16x16_bf16 {vr(ac)}, {vr(x+2*k,2)}, {vr(PP+2*T,2)}, {c}")
    for n in range(NG + 4):
        if n < NG:
            st1(n)
        else:
            a("s_nop 1")
        if 0 <= n - 4 < NG:
            st4(n - 4)
        else:
            a("s_nop 1")
        if 0 <= n - 3 < NG:
            st3(n - 3)
        else:
            a("s_nop 1")
        if 0 <= n - 2 < NG:
            st2(n - 2)
        else:
            a("s_nop 3")
    a("s_nop 7")
    a("s_nop 7")
    g.stamp(17)
    for ai in range(8):
        a(f"v_cvt_pk_bf16_f32 v{64+2*ai}, v{AC+4*ai}, v{AC+4*ai+1}")
        a(f"v_cvt_pk_bf16_f32 v{65+2*ai}, v{AC+4*ai+2}, v{AC+4*ai+3}")
    a("v_lshlrev_b32 v8, 6, v14")
    a("v_and_b32 v9, 1, v3")
    a("v_lshl_add_u32 v8, v9, 5, v8")
    a("v_lshrrev_b32 v9, 1, v3")
    a("v_lshl_add_u32 v8, v9, 4, v8")
    for m in range(4):
        a(f"v_permlane16_swap_b32 v{64+4*m}, v{66+4*m}")
        a(f"v_permlane16_swap_b32 v{65+4*m}, v{67+4*m}")
    a("s_lshl_b32 s10, s9, 15")
    a("s_lshl_b32 s11, s3, 12")
    a("s_add_u32 s10, s10, s11")
    a(f"s_add_u32 s10, s10, {g.B_PART}")
    for m in range(4):
        a(f"buffer_store_dwordx4 {vr(64+4*m)}, v8, s[56:59], s10 offen offset:{m*1024} sc1")
    g.stamp(3)
    signal(192, "p", 0)
    a("s_lshl_b32 s11, s3, 13")
    for i in range(8):
        a("s_mov_b32 m0, s11")
        a(f"s_waitcnt vmcnt({g.WBF-1})")
        a("buffer_load_dwordx4 v4, s[48:51], s97 offen nt lds")
        if i < 7:
            a("s_add_u32 s97, s97, 0x4000")
            a("s_add_u32 s11, s11, 0x400")
    poll(192, 64, "p")
    g.stamp(4)
    a("v_lshlrev_b32 v8, 7, v1")
    a("s_lshl_b32 s10, s4, 3")
    a(f"s_add_u32 s10, s10, {g.B_STAT}")
    a("buffer_load_dwordx2 v[12:13], v8, s[56:59], s10 offen sc1")
    a("v_lshrrev_b32 v10, 2, v1")
    a("v_lshlrev_b32 v8, 15, v10")
    a("v_and_b32 v9, 3, v1")
    a("v_lshl_add_u32 v8, v9, 4, v8")
    a("s_lshl_b32 s10, s14, 3")
    a("s_add_u32 s10, s10, s3")
    a("s_lshl_b32 s10, s10, 10")
    a("s_lshl_b32 s11, s4, 6")
    a("s_add_u32 s10, s10, s11")
    a(f"s_add_u32 s10, s10, {g.B_PART}")
    for i in range(4):
        a(f"buffer_load_dwordx4 {vr(32+4*i)}, v8, s[56:59], s10 offen sc1")
        if i < 3:
            a("s_add_u32 s10, s10, 0x80000")
    a("s_waitcnt vmcnt(4)")
    g.stamp(24)
    def allred32(op, reg, tmp):
        for r in (1, 2, 4, 8):
            a("s_nop 1")
            a(f"{op}_dpp v{reg}, v{reg}, v{reg} row_ror:{r} row_mask:0xf bank_mask:0xf")
        a(f"v_mov_b32 v{tmp}, v{reg}")
        a("s_nop 1")
        a(f"v_permlane16_swap_b32 v{reg}, v{tmp}")
        a("s_nop 1")
        a(f"{op} v{reg}, v{reg}, v{tmp}")
    a("v_mov_b32 v14, v12")
    allred32("v_max_f32", 14, 8)
    a("v_sub_f32 v12, v12, v14")
    a("v_mul_f32 v12, s15, v12")
    a("v_exp_f32 v12, v12")
    a("s_nop 0")
    a("v_mul_f32 v13, v12, v13")
    allred32("v_add_f32", 13, 8)
    a("v_rcp_f32 v14, v13")
    a("s_nop 0")
    a("v_fma_f32 v15, -v13, v14, 1.0")
    a("v_fmac_f32 v14, v15, v14")
    a("v_mul_f32 v12, v12, v14")
    a("v_lshlrev_b32 v10, 2, v10")
    for i in range(4):
        a(f"v_add_u32 v8, {i*64}, v10")
        a(f"ds_bpermute_b32 v{64+i}, v8, v12")
    a("s_waitcnt vmcnt(0) lgkmcnt(0)")
    g.stamp(25)
    a("s_lshl_b32 s11, s3, 13")
    a("v_lshlrev_b32 v11, 4, v1")
    a("v_add_u32 v11, s11, v11")
    a("v_add_u32 v15, 0x10000, v11")
    for i in range(16):
        a(f"ds_read_b128 {vr(128+4*i)}, {'v15' if i < 8 else 'v11'} offset:{(i%8)*1024}")
    for b in range(2):
        for ii in range(2):
            i = 2*b + ii
            for k in range(4):
                a(f"v_lshlrev_b32 v8, 16, v{32+4*i+k}")
                a(f"v_and_b32 v14, 0xffff0000, v{32+4*i+k}")
                if ii == 0:
                    a(f"v_mul_f32 v{72+8*b+2*k}, v{64+i}, v8")
                    a(f"v_mul_f32 v{73+8*b+2*k}, v{64+i}, v14")
                else:
                    a(f"v_fmac_f32 v{72+8*b+2*k}, v{64+i}, v8")
                    a(f"v_fmac_f32 v{73+8*b+2*k}, v{64+i}, v14")
    a("s_nop 1")
    for k in range(16):
        a(f"v_add_f32_dpp v{72+k}, v{72+k}, v{72+k} row_ror:4 row_mask:0xf bank_mask:0xf")
    g.red8(72, 16, 88)
    a("s_lshl_b32 s10, s3, 8")
    a(f"s_add_u32 s10, s10, {LB_CL}")
    a("v_lshlrev_b32 v8, 5, v9")
    a("v_add_u32 v8, s10, v8")
    a("s_mov_b64 exec, 0xf")
    for b in range(2):
        a(f"ds_write_b128 v8, {vr(72+8*b)} offset:{b*128}")
        a(f"ds_write_b128 v8, {vr(76+8*b)} offset:{b*128+16}")
    a("s_mov_b64 exec, -1")
    a("v_lshlrev_b32 v8, 2, v7")
    a("v_add_u32 v8, s10, v8")
    a("s_waitcnt lgkmcnt(0)")
    for b in range(2):
        for i in range(16):
            a(f"ds_read_b32 v{32+16*b+i}, v8 offset:{b*128 + i*8}")
    for k in range(16):
        a(f"v_mov_b32 v{96+k}, 0")
    a("s_waitcnt lgkmcnt(0)")
    for i in range(16):
        for w in range(4):
            a(f"v_lshlrev_b32 v8, 16, v{128+4*i+w}")
            a(f"v_and_b32 v9, 0xffff0000, v{128+4*i+w}")
            for b in range(2):
                a(f"v_fmac_f32 v{96+8*b+2*w}, v8, v{32+16*b+i}")
                a(f"v_fmac_f32 v{96+8*b+2*w+1}, v9, v{32+16*b+i}")
    g.stamp(26)
    a("v_lshlrev_b32 v8, 10, v7")
    a("v_and_b32 v9, 31, v1")
    a("v_lshl_add_u32 v8, v9, 5, v8")
    a("v_add_u32 v8, s11, v8")
    for b in range(2):
        a(f"ds_write_b128 v8, {vr(96+8*b)} offset:{b*2048}")
        a(f"ds_write_b128 v8, {vr(100+8*b)} offset:{b*2048+16}")
    a("s_waitcnt lgkmcnt(0)")
    a("s_barrier")
    a("v_and_b32 v8, 255, v0")
    a("v_lshlrev_b32 v8, 2, v8")
    a("v_lshrrev_b32 v9, 8, v0")
    a("v_lshl_add_u32 v8, v9, 11, v8")
    for w in range(8):
        for hf in range(2):
            a(f"ds_read_b32 v{32+2*w+hf}, v8 offset:{w*8192 + hf*1024}")
    a("s_waitcnt lgkmcnt(0)")
    for st in (8, 4, 2, 1):
        for i in range(st):
            a(f"v_add_f32 v{32+i}, v{32+i}, v{32+i+st}")
    a("s_lshl_b32 s10, s9, 11")
    a(f"s_add_u32 s10, s10, {g.CTX_P}")
    a("v_lshlrev_b32 v8, 2, v0")
    a("buffer_store_dword v32, v8, s[56:59], s10 offen sc1")
    g.stamp(5)
    signal(448, "c", 0)
    a("s_branch L_end")
    emit_f1(g)

def fw_dma(g, win):
    a = g.a
    a("s_and_b32 s68, s96, 1")
    a("s_lshr_b32 s69, s96, 3")
    a("s_bfe_u32 s70, s96, 0x20001")
    a("s_movk_i32 s10, 4682")
    a("v_mul_lo_u32 v30, v1, s10")
    a("v_lshrrev_b32 v30, 16, v30")
    a("v_mul_u32_u24 v31, 14, v30")
    a("v_sub_u32 v31, v1, v31")
    a("v_mul_u32_u24 v30, 896, v30")
    a("v_lshl_add_u32 v30, v31, 4, v30")
    a("s_lshl_b32 s10, s69, 9")
    a("s_lshl_b32 s11, s3, 6")
    a("s_add_u32 s10, s10, s11")
    a("s_mul_i32 s10, s10, 896")
    a("s_mul_i32 s11, s70, 224")
    a("s_add_u32 s10, s10, s11")
    a("s_cmp_eq_u32 s68, 1")
    a(f"s_cselect_b32 s44, s{g.P_BWO}, s{g.P_WO}")
    a(f"s_cselect_b32 s45, s{g.P_BWO+1}, s{g.P_WO+1}")
    a(f"s_mov_b32 s46, {4096*896:#x}")
    a("s_mov_b32 s47, 0x20000")
    a("s_mul_i32 s11, s3, 64*224")
    a(f"s_add_u32 s11, s11, {g.LFW}")
    a("s_mov_b32 exec_hi, 0x00ffffff")
    for i in range(16):
        a("s_mov_b32 m0, s11")
        a(f"s_waitcnt vmcnt({win-1})" if win else "s_nop 0")
        a("buffer_load_dwordx4 v30, s[44:47], s10 offen nt lds")
        if i < 15:
            a(f"s_add_u32 s10, s10, {4*896}")
            a(f"s_add_u32 s11, s11, {4*224}")
    a("s_mov_b64 exec, -1")

def emit_f1(g):
    a, vr, srd, poll = g.a, g.vr, g.srd, g.poll
    LFW = g.LFW
    LF_O = 0
    LF_S = 2048
    LF_R = 4096
    g.STV = 8
    def wperm():
        a("s_waitcnt lgkmcnt(0)")
        for T in range(4):
            for w in range(4):
                R = [128 + 16*T + 4*i + w for i in range(4)]
                P = 192 + 16*T + 4*w
                a(f"v_perm_b32 v{P}, v{R[1]}, v{R[0]}, s100")
                a(f"v_perm_b32 v{P+1}, v{R[3]}, v{R[2]}, s100")
                a(f"v_perm_b32 v{P+2}, v{R[1]}, v{R[0]}, s101")
                a(f"v_perm_b32 v{P+3}, v{R[3]}, v{R[2]}, s101")
    a("L_F1:")
    a("s_and_b32 s5, s96, 1")
    a("s_lshr_b32 s6, s96, 3")
    a("s_bfe_u32 s7, s96, 0x20001")
    srd(52, g.P_OUT, g.P_OUT+1, 1792*2)
    a("v_mov_b32 v9, 0")
    a(f"ds_read_b32 v26, v9 offset:{g.LA_Q+512}")
    a("s_waitcnt lgkmcnt(0)")
    if g.FWLATE:
        a("s_cmp_ge_u32 s3, 4")
        a("s_cbranch_scc1 L_F1_nd")
        fw_dma(g, 0)
        a("L_F1_nd:")
        a("s_waitcnt vmcnt(0)")
    a("v_min_u32 v8, 13, v2")
    a("v_lshlrev_b32 v8, 4, v8")
    a("v_mul_u32_u24 v9, 896, v3")
    a("v_add_u32 v8, v8, v9")
    a("s_mul_i32 s10, s3, 64*224")
    a(f"s_add_u32 s10, s10, {LFW}")
    a("v_add_u32 v8, s10, v8")
    for T in range(4):
        for i in range(4):
            a(f"ds_read_b128 {vr(128+16*T+4*i)}, v8 offset:{T*16*224 + i*224}")
    a("s_cmp_eq_u32 s5, 1")
    a("s_cbranch_scc1 L_F1_B")
    a("s_lshr_b32 s12, s3, 2")
    a("s_lshl_b32 s10, s6, 1")
    a("s_add_u32 s10, s10, s12")
    a("s_mul_i32 s10, s10, 6")
    a("s_lshl_b32 s11, s10, 12")
    a(f"s_add_u32 s11, s11, {g.A_PART}")
    a("v_and_b32 v8, 255, v0")
    a("v_lshlrev_b32 v8, 3, v8")
    a("v_cmp_le_u32 vcc, 6, v1")
    a("v_mov_b32 v9, 90")
    a("s_nop 1")
    a("v_cndmask_b32 v9, 0, v9, vcc")
    a("v_add_u32 v9, v9, v1")
    a("v_cmp_gt_u32 vcc, 12, v1")
    a("s_nop 1")
    a("v_cndmask_b32 v9, 0, v9, vcc")
    a("v_lshlrev_b32 v9, 12, v9")
    a("s_mov_b32 s12, 0")
    a("L_fa_ld:")
    a("buffer_load_dwordx4 v[56:59], v9, s[56:59], s11 offen offset:2048 sc1")
    for b in range(2):
        for sp in range(6):
            a(f"s_add_u32 s13, s11, {b*96*4096 + sp*4096}")
            a(f"buffer_load_dwordx2 v[{32+2*(b*6+sp)}:{33+2*(b*6+sp)}], v8, s[56:59], s13 offen sc1")
    a("s_cmp_lg_u32 s12, 0")
    a("s_cbranch_scc1 L_fa_w")
    wperm()
    a("L_fa_w:")
    a("s_waitcnt vmcnt(0)")
    a("v_xor_b32 v12, v57, v26")
    a("v_xor_b32 v13, v59, v26")
    a("v_or_b32 v12, v12, v13")
    for u in range(12):
        a(f"v_xor_b32 v13, v{33+2*u}, v26")
        a("v_or_b32 v12, v12, v13")
    a("v_cmp_ne_u32 vcc, 0, v12")
    a("s_cmp_eq_u64 vcc, 0")
    a("s_cbranch_scc1 L_fa_ok")
    a(f"s_sleep {g.SLPF}")
    a("s_add_u32 s12, s12, 1")
    a("s_cmp_lt_u32 s12, 0x40000")
    a("s_cbranch_scc1 L_fa_ld")
    a("L_fa_ok:")
    g.STV = 28
    g.stamp(21)
    for u in range(12):
        a(f"v_readlane_b32 s{64+u}, v56, {u}")
        a(f"v_readlane_b32 s{76+u}, v58, {u}")
    a("s_nop 1")
    for b in range(2):
        a(f"v_mov_b32 v12, s{64+6*b}")
        for sp in range(1, 6):
            a(f"v_max_f32 v12, s{64+6*b+sp}, v12")
        for sp in range(6):
            a(f"v_sub_f32 v{64+sp}, s{64+6*b+sp}, v12")
            a(f"v_mul_f32 v{64+sp}, s15, v{64+sp}")
            a(f"v_exp_f32 v{64+sp}, v{64+sp}")
        a("s_nop 0")
        a(f"v_mul_f32 v13, s{76+6*b}, v64")
        a(f"v_mul_f32 v{10+b}, v64, v{32+12*b}")
        for sp in range(1, 6):
            a(f"v_fmac_f32 v13, s{76+6*b+sp}, v{64+sp}")
            a(f"v_fmac_f32 v{10+b}, v{64+sp}, v{32+12*b+2*sp}")
        a("v_rcp_f32 v12, v13")
        a("s_nop 0")
        a("v_fma_f32 v14, -v13, v12, 1.0")
        a("v_fmac_f32 v12, v14, v12")
        a(f"v_mul_f32 v{10+b}, v{10+b}, v12")
    a("s_branch L_F1_j")
    a("L_F1_B:")
    g.STV = 8
    wperm()
    a("s_lshl_b32 s12, s6, 1")
    poll(448, 8, "fb", 12)
    g.stamp(21)
    a("s_lshr_b32 s12, s3, 2")
    a("s_lshl_b32 s10, s6, 1")
    a("s_add_u32 s10, s10, s12")
    a("s_lshl_b32 s11, s10, 13")
    a(f"s_add_u32 s11, s11, {g.CTX_P}")
    a("v_and_b32 v8, 255, v0")
    a("v_lshlrev_b32 v8, 2, v8")
    for qt in range(4):
        a(f"s_add_u32 s13, s11, {qt*2048}")
        for b in range(2):
            a(f"buffer_load_dword v{64+b*4+qt}, v8, s[56:59], s13 offen offset:{b*1024} sc1")
    a("s_waitcnt vmcnt(0)")
    for b in range(2):
        a(f"v_add_f32 v{10+b}, v{64+b*4}, v{65+b*4}")
        a(f"v_add_f32 v12, v{66+b*4}, v{67+b*4}")
        a(f"v_add_f32 v{10+b}, v{10+b}, v12")
    a("L_F1_j:")
    g.STV = 28
    g.stamp(27)
    a("v_cvt_pk_bf16_f32 v12, v10, v11")
    a("v_lshlrev_b32 v8, 1, v0")
    a(f"ds_write_b16 v8, v12 offset:{LF_O}")
    a(f"ds_write_b16_d16_hi v8, v12 offset:{LF_O+1024}")
    a("s_waitcnt lgkmcnt(0)")
    a("s_barrier")
    a("v_and_b32 v8, 1, v2")
    a("v_lshlrev_b32 v8, 10, v8")
    a("v_lshl_add_u32 v8, v3, 3, v8")
    a("s_lshl_b32 s10, s3, 7")
    a("v_add_u32 v8, s10, v8")
    for T in range(4):
        a(f"ds_read_b64 v[{64+2*T}:{65+2*T}], v8 offset:{LF_O + T*32}")
    a("s_waitcnt lgkmcnt(0)")
    for T in range(4):
        for w in range(4):
            for e in range(2):
                ac = 96 + 4*(2*w+e)
                c = "0" if T == 0 else vr(ac)
                a(f"v_mfma_f32_16x16x16_bf16 {vr(ac)}, v[{64+2*T}:{65+2*T}], {vr(192+16*T+4*w+2*e,2)}, {c}")
    a("s_nop 7")
    a("s_nop 7")
    g.stamp(28)
    for k in range(8):
        a(f"v_mov_b32 v{32+k}, v{96+4*k}")
        a(f"v_mov_b32 v{40+k}, v{97+4*k}")
    a("s_lshl_b32 s10, s3, 10")
    a("v_lshlrev_b32 v8, 5, v2")
    a("v_add_u32 v8, s10, v8")
    a("s_mov_b64 exec, 0x3fff")
    a(f"ds_write_b128 v8, {vr(32)} offset:{LF_R}")
    a(f"ds_write_b128 v8, {vr(36)} offset:{LF_R+16}")
    a(f"ds_write_b128 v8, {vr(40)} offset:{LF_R+512}")
    a(f"ds_write_b128 v8, {vr(44)} offset:{LF_R+528}")
    a("s_mov_b64 exec, -1")
    a("s_waitcnt lgkmcnt(0)")
    a("s_barrier")
    a("s_cmp_ge_u32 s3, 4")
    a("s_cbranch_scc1 L_end")
    a("v_and_b32 v12, 127, v0")
    a("v_lshrrev_b32 v13, 7, v0")
    a("v_lshlrev_b32 v8, 2, v0")
    for w in range(8):
        a(f"ds_read_b32 v{32+w}, v8 offset:{LF_R + w*1024}")
    a("s_waitcnt lgkmcnt(0)")
    for st in (4, 2, 1):
        for i in range(st):
            a(f"v_add_f32 v{32+i}, v{32+i}, v{32+i+st}")
    a("s_lshl_b32 s12, s5, 2")
    a("s_add_u32 s12, s12, s7")
    a("s_lshl_b32 s10, s12, 3")
    a("s_add_u32 s10, s10, s6")
    a("s_lshl_b32 s10, s10, 11")
    a(f"s_add_u32 s10, s10, {g.OUT_P}")
    a("v_lshlrev_b32 v14, 3, v0")
    a("v_mov_b32 v33, v26")
    a("buffer_store_dwordx2 v[32:33], v14, s[56:59], s10 offen sc1")
    g.stamp(22)
    a("s_cmp_lg_u32 s6, 0")
    a("s_cbranch_scc1 L_end")
    a("s_mov_b32 s12, 0")
    a("s_add_u32 s11, s10, 0x1000")
    a("s_add_u32 s13, s10, 0x2000")
    a("s_add_u32 s93, s10, 0x3000")
    a("L_f2_ld:")
    for hp in range(1, 8):
        sr = ["s10", "s11", "s13", "s93"][hp // 2]
        a(f"buffer_load_dwordx2 v[{64+2*hp}:{65+2*hp}], v14, s[56:59], {sr} offen offset:{(hp%2)*2048} sc1")
    a("s_waitcnt vmcnt(0)")
    a("v_xor_b32 v8, v67, v26")
    for hp in range(2, 8):
        a(f"v_xor_b32 v9, v{65+2*hp}, v26")
        a("v_or_b32 v8, v8, v9")
    a("v_cmp_ne_u32 vcc, 0, v8")
    a("s_cmp_eq_u64 vcc, 0")
    a("s_cbranch_scc1 L_f2_ok")
    a("s_sleep 2")
    a("s_add_u32 s12, s12, 1")
    a("s_cmp_lt_u32 s12, 0x40000")
    a("s_cbranch_scc1 L_f2_ld")
    a("L_f2_ok:")
    g.stamp(23)
    for hp in range(1, 8):
        a(f"v_mov_b32 v{32+hp}, v{64+2*hp}")
    for st in (4, 2, 1):
        for i in range(st):
            a(f"v_add_f32 v{32+i}, v{32+i}, v{32+i+st}")
    a("v_cvt_pk_bf16_f32 v32, v32, v32")
    a("s_mul_i32 s10, s5, 448")
    a("s_mul_i32 s11, s7, 112")
    a("s_add_u32 s10, s10, s11")
    a("s_lshl_b32 s10, s10, 1")
    a("v_mul_u32_u24 v8, 896, v13")
    a("v_add_u32 v8, v8, v12")
    a("v_lshlrev_b32 v8, 1, v8")
    a("v_cmp_gt_u32 vcc, 112, v12")
    a("s_and_saveexec_b64 s[12:13], vcc")
    a("buffer_store_short v32, v8, s[52:55], s10 offen")
    if g.DBGT:
        a("s_mov_b64 exec, -1")
        a("s_cmp_lg_u32 s3, 0")
        a("s_cbranch_scc1 L_end")
        a("s_waitcnt vmcnt(0)")
        a("s_memrealtime s[12:13]")
        a("s_waitcnt lgkmcnt(0)")
        a("s_sub_u32 s12, s12, s94")
        a("v_mov_b32 v8, s12")
        a("s_lshl_b32 s10, s5, 2")
        a("s_add_u32 s10, s10, s7")
        a("s_lshl_b32 s10, s10, 2")
        a("s_add_u32 s10, s10, 8")
        a("v_mov_b32 v9, s10")
        a("s_mov_b64 exec, 1")
        a("buffer_store_dword v8, v9, s[60:63], 0 offen")
    a("s_branch L_end")
```

```python
import sys

KN = "concat_heads__mha_block_cached__compressed_kv_cla__decode_kernel"
OUT = []
def a(s):
    OUT.append(s)

A_PART = 0x500000
A_STAT = 0x30000
QABS   = 0x40000
B_STAT = 0x60000
CTX_P  = 0x64000
OUT_P  = 0x90000
QV     = 0xB0000
FLAGS  = 0xE0000
CNT    = 0xF8000
STAMP  = 0xC0000
B_PART = 0x100000
WS_SIZE = 0x10000000

C1 = 0x3DB8AA3B
LDS_K1 = 163840
LFW = 40960

STAMPS = "--stamps" in sys.argv
DBGT = "--dbgt" in sys.argv
LOCKSTEP = False
def argval(name, default):
    for x in sys.argv:
        if x.startswith(name + "="):
            return int(x.split("=")[1])
    return default
TA = argval("TA", 40)
POOL = argval("POOL", 48)
TB = (256 - POOL - 4 * TA) // 2
assert 4 * TA + 2 * TB + POOL == 256
TA0, TAK = TA // 8, TA % 8
TB0, TBK = TB // 8, TB % 8
assert TB0 >= 3 and TA0 >= 3 and TA0 + (1 if TAK else 0) <= 6
ILV = argval("ILV", 0)
assert not ILV or (TAK == 0 and TBK == 0)
TSTR = 8192 * (8 if ILV else 1)
NOQ = "--noq" in sys.argv
NOB = "--nob" in sys.argv
WQNT = "--wqnt" in sys.argv

def srd(dst, lo, hi, size):
    a(f"s_mov_b32 s{dst}, s{lo}")
    a(f"s_mov_b32 s{dst+1}, s{hi}")
    a(f"s_mov_b32 s{dst+2}, {size:#x}")
    a(f"s_mov_b32 s{dst+3}, 0x20000")

def srd_off(dst, lo, hi, soff, size):
    a(f"s_add_u32 s{dst}, s{lo}, s{soff}")
    a(f"s_addc_u32 s{dst+1}, s{hi}, 0")
    a(f"s_mov_b32 s{dst+2}, {size:#x}")
    a(f"s_mov_b32 s{dst+3}, 0x20000")

def load_kernargs():
    a("s_load_dwordx16 s[16:31], s[0:1], 0")
    a("s_load_dwordx8 s[32:39], s[0:1], 64")
    a("s_load_dwordx4 s[40:43], s[0:1], 96")

P_AX, P_K, P_V, P_WQ, P_WO, P_BX, P_CKV, P_BWQ, P_WUK, P_WUV, P_BWO, P_OUT, P_DBG, P_WS = [16 + 2 * i for i in range(14)]

def vr(b, n=4):
    return f"v[{b}:{b+n-1}]"

LDS_STAMP = 163584
STV = 8
def stamp(idx):
    if not STAMPS:
        return
    lab = f"L_st{len(OUT)}"
    a(f"s_cmp_lg_u32 s3, 0")
    a(f"s_cbranch_scc1 {lab}")
    a("s_memrealtime s[88:89]")
    a("s_waitcnt lgkmcnt(0)")
    a(f"v_mov_b32 v{STV}, s88")
    a(f"v_mov_b32 v{STV+1}, s89")
    a(f"v_mov_b32 v{STV+2}, {LDS_STAMP + idx*8}")
    a("s_mov_b64 s[90:91], exec")
    a("s_mov_b64 exec, 1")
    a(f"ds_write_b64 v{STV+2}, v[{STV}:{STV+1}]")
    a("s_mov_b64 exec, s[90:91]")
    a("s_waitcnt lgkmcnt(0)")
    a(f"{lab}:")

def stamp_init():
    if not STAMPS:
        return
    a("v_mov_b32 v8, 0")
    a("v_mov_b32 v9, 0")
    a("v_lshlrev_b32 v10, 3, v1")
    a(f"v_add_u32 v10, {LDS_STAMP}, v10")
    a("s_mov_b64 exec, 0xffffffff")
    a("ds_write_b64 v10, v[8:9]")
    a("s_mov_b64 exec, -1")
    a("s_waitcnt lgkmcnt(0)")

def stamp_dump():
    if not STAMPS:
        return
    a("s_mov_b64 exec, -1")
    a("s_cmp_lg_u32 s3, 0")
    a("s_cbranch_scc1 L_exit")
    stamp(31)
    a("v_lshlrev_b32 v10, 3, v1")
    a(f"v_add_u32 v11, {LDS_STAMP}, v10")
    a("s_mov_b64 exec, 0xffffffff")
    a("ds_read_b64 v[8:9], v11")
    a("s_lshl_b32 s12, s2, 8")
    a(f"s_add_u32 s12, s12, {STAMP}")
    a("s_waitcnt lgkmcnt(0)")
    a("buffer_store_dwordx2 v[8:9], v10, s[56:59], s12 offen")

def get_nonce(tag):
    a("v_mov_b32 v9, 0")
    a("s_mov_b32 s11, 0")
    a(f"L_nl_{tag}:")
    a("buffer_load_dwordx2 v[10:11], v9, s[60:63], 0 offen sc1")
    a("s_waitcnt vmcnt(0)")
    a("v_readfirstlane_b32 s94, v10")
    a("v_readfirstlane_b32 s95, v11")
    a("s_cmp_lg_u64 s[94:95], 0")
    a(f"s_cbranch_scc1 L_nd_{tag}")
    a("s_sleep 4")
    a("s_add_u32 s11, s11, 1")
    a("s_cmp_lt_u32 s11, 0x40000")
    a(f"s_cbranch_scc1 L_nl_{tag}")
    a(f"L_nd_{tag}:")

def poll_loop(tag, first, n, offreg, slp):
    a("v_lshlrev_b32 v9, 7, v1")
    a(f"s_mov_b32 s10, {FLAGS + first*128:#x}")
    if offreg is not None:
        a(f"s_lshl_b32 s11, s{offreg}, 9")
        a("s_add_u32 s10, s10, s11")
    a("s_mov_b32 s11, 0")
    if n < 64:
        a(f"s_mov_b64 exec, {(1 << n) - 1:#x}")
    a(f"L_pl_{tag}:")
    a(f"buffer_load_dwordx2 v[10:11], v9, s[56:59], s10 offen sc1")
    a("s_waitcnt vmcnt(0)")
    a("v_cmp_ne_u64 vcc, s[94:95], v[10:11]")
    a("s_cmp_eq_u64 vcc, 0")
    a(f"s_cbranch_scc1 L_pd_{tag}")
    a(f"s_sleep {slp}")
    a("s_add_u32 s11, s11, 1")
    a("s_cmp_lt_u32 s11, 0x40000")
    a(f"s_cbranch_scc1 L_pl_{tag}")
    a(f"L_pd_{tag}:")
    a("s_mov_b64 exec, -1")

def poll(first, n, tag, offreg=None, nonce=False):
    a("s_cmp_lg_u32 s3, 0")
    a(f"s_cbranch_scc1 L_pw_{tag}")
    if nonce:
        get_nonce(tag)
    poll_loop(tag, first, n, offreg, SLP)
    a(f"L_pw_{tag}:")
    a("s_barrier")

def set_flag(first, sreg):
    a("v_mov_b32 v10, s94")
    a("v_mov_b32 v11, s95")
    a(f"s_lshl_b32 s10, s{sreg}, 7")
    a(f"s_add_u32 s10, s10, {FLAGS + first*128:#x}")
    a("v_mov_b32 v9, 0")
    a("s_mov_b64 exec, 1")
    a("buffer_store_dwordx2 v[10:11], v9, s[56:59], s10 offen sc1")
    a("s_mov_b64 exec, -1")

def wave_split(n0, k):
    a("s_sub_u32 s10, s3, 1")
    a("s_max_i32 s10, s10, 0")
    a(f"s_min_u32 s10, s10, {k}")
    a("s_add_u32 s7, s7, s10")
    a("s_sub_u32 s10, s3, 1")
    a(f"s_cmp_lt_u32 s10, {k}")
    a(f"s_cselect_b32 s14, {n0+1}, {n0}")

def s0_task():
    LS_P = 0
    LS_Q = 4096
    W0, X0, A0, T0 = 128, 160, 176, 192
    a("s_lshr_b32 s92, s13, 6")
    a("s_and_b32 s93, s13, 63")
    a("s_lshl_b32 s93, s93, 7")
    a("v_lshrrev_b32 v10, 3, v1")
    a("v_and_b32 v11, 7, v1")
    a("v_lshlrev_b32 v4, 13, v10")
    a("v_lshl_add_u32 v4, v11, 4, v4")
    a("v_lshlrev_b32 v7, 1, v10")
    a("s_cmp_eq_u32 s92, 1")
    a(f"s_cselect_b32 s44, s{P_BWQ}, s{P_WQ}")
    a(f"s_cselect_b32 s45, s{P_BWQ+1}, s{P_WQ+1}")
    a(f"s_mov_b32 s46, {448*8192:#x}")
    a("s_mov_b32 s47, 0x20000")
    a(f"s_cselect_b32 s64, s{P_BX}, s{P_AX}")
    a(f"s_cselect_b32 s65, s{P_BX+1}, s{P_AX+1}")
    a("s_mov_b32 s66, 1792")
    a("s_mov_b32 s67, 0x20000")
    a(f"s_mul_i32 s12, s3, {56*8192}")
    a("s_add_u32 s12, s12, s93")
    for i in range(7):
        a(f"buffer_load_dwordx4 {vr(W0+4*i)}, v4, s[44:47], s12 offen nt")
        if i < 6:
            a("s_add_u32 s12, s12, 0x10000")
    a("s_mul_i32 s12, s3, 112")
    for i in range(7):
        for b in range(2):
            a(f"buffer_load_ushort v{X0+2*i+b}, v7, s[64:67], s12 offen offset:{b*896 + i*16}")
    for i in range(EARLY):
        a_half_issue("K", i // 2, i % 2, i)
    for k in range(16):
        a(f"v_mov_b32 v{A0+k}, 0")
    a(f"s_waitcnt vmcnt({4*EARLY})")
    for i in range(7):
        for b in range(2):
            a(f"v_lshlrev_b32 v{8+b}, 16, v{X0+2*i+b}")
        for b in range(2):
            for w in range(4):
                a(f"v_dot2_f32_bf16 v{A0+8*b+2*w}, v{W0+4*i+w}, v{X0+2*i+b}, v{A0+8*b+2*w}")
                a(f"v_dot2_f32_bf16 v{A0+8*b+2*w+1}, v{W0+4*i+w}, v{8+b}, v{A0+8*b+2*w+1}")
    a("s_nop 2")
    red8(A0, 16, T0)
    a("s_lshl_b32 s12, s3, 9")
    a("v_lshlrev_b32 v8, 5, v11")
    a("v_add_u32 v8, s12, v8")
    a("s_mov_b64 exec, 0xff")
    for b in range(2):
        a(f"ds_write_b128 v8, {vr(A0+8*b)} offset:{LS_P + b*256}")
        a(f"ds_write_b128 v8, {vr(A0+4+8*b)} offset:{LS_P + b*256 + 16}")
    a("s_mov_b64 exec, -1")
    a("s_waitcnt lgkmcnt(0)")
    a("s_barrier")
    a("s_cmp_lg_u32 s3, 0")
    a("s_cbranch_scc1 L_S0_done")
    a("v_lshlrev_b32 v8, 2, v1")
    for w in range(8):
        for b in range(2):
            a(f"ds_read_b32 v{W0+8*b+w}, v8 offset:{LS_P + w*512 + b*256}")
    a("s_waitcnt lgkmcnt(0)")
    for st in (4, 2, 1):
        for b in range(2):
            for i in range(st):
                a(f"v_add_f32 v{W0+8*b+i}, v{W0+8*b+i}, v{W0+8*b+i+st}")
    a(f"v_cvt_pk_bf16_f32 v{W0}, v{W0}, v{W0+8}")
    a("v_lshlrev_b32 v8, 1, v1")
    a(f"ds_write_b16 v8, v{W0} offset:{LS_Q}")
    a(f"ds_write_b16_d16_hi v8, v{W0} offset:{LS_Q+128}")
    a("v_lshlrev_b32 v8, 4, v1")
    a("s_waitcnt lgkmcnt(0)")
    a("s_mov_b64 exec, 0xffff")
    a(f"ds_read_b128 {vr(W0)}, v8 offset:{LS_Q}")
    a("s_lshl_b32 s10, s92, 14")
    a("s_add_u32 s10, s10, s93")
    a(f"s_add_u32 s10, s10, {QV}")
    a("s_waitcnt lgkmcnt(0)")
    a(f"buffer_store_dwordx4 {vr(W0)}, v4, s[56:59], s10 offen sc1")
    a("s_and_b32 s10, s13, 0x43")
    a("s_cmp_lg_u32 s10, 0")
    a("s_cbranch_scc1 L_S0_nz")
    a("s_lshl_b32 s10, s13, 5")
    a(f"s_add_u32 s10, s10, {CNT}")
    a("v_lshlrev_b32 v8, 11, v1")
    a("v_mov_b32 v9, 0")
    a("s_mov_b64 exec, 3")
    a("buffer_store_dword v9, v8, s[56:59], s10 offen sc1")
    a("L_S0_nz:")
    a("s_mov_b64 exec, -1")
    get_nonce("s0")
    set_flag(0, 13)
    stamp(7)
    a("L_S0_done:")

def red8(base, n, tmp):
    for k in range(n):
        a(f"v_add_f32_dpp v{base+k}, v{base+k}, v{base+k} row_ror:8 row_mask:0xf bank_mask:0xf")
    for k in range(n):
        a(f"v_mov_b32 v{tmp+k}, v{base+k}")
    a("s_nop 1")
    for k in range(n):
        a(f"v_permlane16_swap_b32 v{base+k}, v{tmp+k}")
    a("s_nop 1")
    for k in range(n):
        a(f"v_add_f32 v{base+k}, v{base+k}, v{tmp+k}")
    for k in range(n):
        a(f"v_mov_b32 v{tmp+k}, v{base+k}")
    a("s_nop 1")
    for k in range(n):
        a(f"v_permlane32_swap_b32 v{base+k}, v{tmp+k}")
    a("s_nop 1")
    for k in range(n):
        a(f"v_add_f32 v{base+k}, v{base+k}, v{tmp+k}")

RING = [32, 64, 96]
QOP = 16
ACC = 128
SC = 192
PP = 216
DD = 228
PT = 236
LA_QPART = 0
LA_Q = 16384
LA_OPART = 17408
LA_STAT = 25600

SLPF = argval("SLPF", 2)
SLP = argval("SLP", 24)
SLP0 = argval("SLP0", 0)
SLPA = argval("SLPA", 16)
EARLY = argval("EARLY", 0)
WBF = argval("WBF", 8)
VPAIR = argval("VPAIR", 0)
GRABE = argval("GRABE", 0)
FWLATE = argval("FWLATE", 1)
WIN = argval("WIN", 4)
NR = argval("NR", 6)
WB = argval("WB", 4)
def hbuf(i):
    return 32 + 16 * (i % NR)

def a_half_issue(kind, t, hh, idx):
    base = hbuf(idx)
    if kind == "K":
        a(f"s_add_u32 s10, s7, {t*TSTR + hh*4096}")
        for j in range(4):
            a(f"buffer_load_dwordx4 {vr(base+j*4)}, v5, s[48:51], s10 offen offset:{j*128} nt")
    else:
        a(f"s_add_u32 s10, s7, {t*TSTR}")
        for i in range(4):
            a(f"buffer_load_dwordx4 {vr(base+i*4)}, v6, s[52:55], s10 offen offset:{i*512+hh*256} nt")

def a_setup():
    load_kernargs()
    a("s_lshl_b32 s7, s7, 13")
    a("s_lshl_b32 s8, s5, 4")
    a("s_add_u32 s8, s8, s4")
    a("s_lshl_b32 s9, s8, 21")
    a("v_and_b32 v8, 7, v2")
    a("v_lshlrev_b32 v5, 9, v8")
    a("v_lshrrev_b32 v8, 3, v2")
    a("v_lshl_add_u32 v5, v8, 6, v5")
    a("v_lshl_add_u32 v5, v3, 4, v5")
    a("v_lshlrev_b32 v6, 11, v3")
    a("v_lshl_add_u32 v6, v2, 4, v6")
    a("s_waitcnt lgkmcnt(0)")
    srd_off(48, P_K, P_K+1, 9, 1 << 21)
    srd_off(52, P_V, P_V+1, 9, 1 << 21)
    srd(56, P_WS, P_WS+1, WS_SIZE)
    srd(60, P_DBG, P_DBG+1, 256)
    a("s_mov_b32 s100, 0x05040100")
    a("s_mov_b32 s101, 0x07060302")
    a(f"s_mov_b32 s15, {C1:#x}")

def a_unit_head():
    a("L_A_head:")
    stamp(8)
    a("s_cmp_lg_u32 s3, 0")
    a("s_cbranch_scc1 L_A_pf")
    if SLP0:
        a("s_cmp_lt_u32 s6, 4")
        a("s_cbranch_scc0 L_ns_qa")
        a(f"s_sleep {SLP0}")
        a("L_ns_qa:")
    poll_loop("qa", 0, 4, 4, SLPA)
    a("v_lshlrev_b32 v8, 4, v1")
    a("s_lshl_b32 s10, s5, 13")
    a("s_lshl_b32 s11, s4, 9")
    a("s_add_u32 s10, s10, s11")
    a(f"s_add_u32 s10, s10, {QV}")
    a("s_mov_b64 exec, 0xffffffff")
    a(f"buffer_load_dwordx4 {vr(QOP)}, v8, s[56:59], s10 offen sc1")
    a("s_waitcnt vmcnt(0)")
    a(f"ds_write_b128 v8, {vr(QOP)} offset:{LA_Q}")
    a("v_mov_b32 v8, s94")
    a("v_mov_b32 v9, 0")
    a(f"ds_write_b32 v9, v8 offset:{LA_Q+512}")
    a("s_mov_b64 exec, -1")
    a("s_waitcnt lgkmcnt(0)")
    stamp(9)
    a("s_barrier")
    a("L_A_pf:")
    a("s_cmp_lt_u32 s6, 4")
    a("s_cbranch_scc1 L_A_pf2")
    for i in range(NR):
        if i == EARLY:
            a("L_A_pf2:")
        if i >= WIN:
            a(f"s_waitcnt vmcnt({4*(WIN-1)})")
        a_half_issue("K", i // 2, i % 2, i)
    a("s_cmp_eq_u32 s3, 0")
    a("s_cbranch_scc1 L_A_nb")
    a("s_barrier")
    a("L_A_nb:")
    a("v_and_b32 v8, 1, v2")
    a("v_lshlrev_b32 v8, 6, v8")
    a("v_lshl_add_u32 v8, v3, 4, v8")
    for j in range(4):
        a(f"ds_read_b128 {vr(QOP+4*j)}, v8 offset:{LA_Q + j*128}")
    a("s_waitcnt lgkmcnt(0)")
    stamp(10)

def cross_g(op, reg, tmp):
    a(f"v_mov_b32 v{tmp}, v{reg}")
    a("s_nop 1")
    a(f"v_permlane32_swap_b32 v{reg}, v{tmp}")
    a("s_nop 1")
    a(f"{op} v{reg}, v{reg}, v{tmp}")
    a(f"v_mov_b32 v{tmp}, v{reg}")
    a("s_nop 1")
    a(f"v_permlane16_swap_b32 v{reg}, v{tmp}")
    a("s_nop 1")
    a(f"{op} v{reg}, v{reg}, v{tmp}")

def grab():
    a("s_lshl_b32 s10, s8, 7")
    a(f"s_add_u32 s10, s10, {CNT}")
    a("v_mov_b32 v14, 1")
    a("v_mov_b32 v15, 0")
    a("s_mov_b64 exec, 1")
    a("buffer_atomic_add v14, v15, s[56:59], s10 offen sc0")
    a("s_mov_b64 exec, -1")

def a_unit_dyn():
    KB, VB = 32, 64
    a("L_A_dyn:")
    a("s_waitcnt vmcnt(0)")
    a("v_readfirstlane_b32 s11, v14")
    a(f"s_cmp_ge_u32 s11, {POOL}")
    a("s_cbranch_scc1 L_A_tail")
    a(f"s_add_u32 s11, s11, {256-POOL}")
    a("s_lshl_b32 s11, s11, 13")
    a("s_add_u32 s12, s11, 0x1000")
    for u in range(2):
        for j in range(4):
            a(f"buffer_load_dwordx4 {vr(KB+(u*4+j)*4)}, v5, s[48:51], s{11+u} offen offset:{j*128} nt")
    for hf in range(2):
        for i in range(4):
            a(f"buffer_load_dwordx4 {vr(VB+(hf*4+i)*4)}, v6, s[52:55], s11 offen offset:{i*512+hf*256} nt")
    grab()
    a("s_waitcnt vmcnt(9)")
    for j in range(4):
        for u in range(2):
            c = "0" if j == 0 else vr(DD+4*u)
            a(f"v_mfma_f32_16x16x32_bf16 {vr(DD+4*u)}, {vr(KB+(u*4+j)*4)}, {vr(QOP+4*j)}, {c}")
    a("s_nop 7")
    a("s_nop 1")
    for i in range(4):
        a(f"v_permlane32_swap_b32 v{DD+i}, v{DD+4+i}")
    a("s_nop 0")
    for i in range(4):
        a(f"v_add_f32_dpp v{SC+i}, v{DD+4+i}, v{DD+i} quad_perm:[1,0,3,2] row_mask:0xf bank_mask:0xf")
    a(f"v_cvt_pk_bf16_f32 v8, v{SC}, v{SC+1}")
    a(f"v_cvt_pk_bf16_f32 v9, v{SC+2}, v{SC+3}")
    a(f"v_lshlrev_b32 v{SC}, 16, v8")
    a(f"v_and_b32 v{SC+1}, 0xffff0000, v8")
    a(f"v_lshlrev_b32 v{SC+2}, 16, v9")
    a(f"v_and_b32 v{SC+3}, 0xffff0000, v9")
    a(f"v_max3_f32 v10, v{SC}, v{SC+1}, v12")
    a(f"v_max3_f32 v10, v10, v{SC+2}, v{SC+3}")
    cross_g("v_max_f32", 10, 8)
    a("v_sub_f32 v11, v12, v10")
    a("v_mul_f32 v11, s15, v11")
    a("v_exp_f32 v11, v11")
    a("v_mov_b32 v12, v10")
    a("v_mul_f32 v9, s15, v10")
    for k in range(4):
        a(f"v_fma_f32 v{SC+k}, v{SC+k}, s15, -v9")
    for k in range(4):
        a(f"v_exp_f32 v{SC+k}, v{SC+k}")
    a("v_readfirstlane_b32 s12, v11")
    a(f"v_add_f32 v10, v{SC}, v{SC+1}")
    a(f"v_add_f32 v9, v{SC+2}, v{SC+3}")
    a("v_add_f32 v10, v10, v9")
    a(f"v_cvt_pk_bf16_f32 v{PP}, v{SC}, v{SC+1}")
    a(f"v_cvt_pk_bf16_f32 v{PP+1}, v{SC+2}, v{SC+3}")
    cross_g("v_add_f32", 10, 8)
    a("v_fma_f32 v13, v13, v11, v10")
    for k in range(16):
        a(f"v_mul_f32 v{ACC+4*k}, s12, v{ACC+4*k}")
    a("s_waitcnt vmcnt(1)")
    for hf in range(2):
        def mf(pw, pT):
            for e in range(2):
                ac = ACC + 4 * (hf*8 + 2*pw + e)
                a(f"v_mfma_f32_16x16x16_bf16 {vr(ac)}, {vr(PP,2)}, {vr(pT+2*e,2)}, {vr(ac)}")
        for w in range(4):
            R = [VB + (hf*4+i)*4 + w for i in range(4)]
            T = PT + 4 * w
            a(f"v_perm_b32 v{T}, v{R[1]}, v{R[0]}, s100")
            a(f"v_perm_b32 v{T+1}, v{R[3]}, v{R[2]}, s100")
            a(f"v_perm_b32 v{T+2}, v{R[1]}, v{R[0]}, s101")
            a(f"v_perm_b32 v{T+3}, v{R[3]}, v{R[2]}, s101")
            if w >= 1:
                mf(w - 1, PT + 4 * (w - 1))
        a("s_nop 1")
        mf(3, PT + 12)
    a("s_branch L_A_dyn")

def a_unit_body(n):
    seq = [("K", t, hh) for t in range(n) for hh in range(2)] + [("V", t, hh) for t in range(n) for hh in range(2)]
    N = len(seq)
    issued = [NR]
    extra = [None]
    def issue_after(idx):
        j = idx + NR
        if j >= N:
            return
        if VPAIR and seq[j][0] == "V":
            if seq[j][2] == 0:
                return
            a_half_issue(*seq[j-1], j - 1)
        a_half_issue(*seq[j], j)
        issued[0] = j + 1
        if POOL and j == N - 1 - GRABE:
            grab()
            extra[0] = j
    for idx, (kind, t, hh) in enumerate(seq):
        base = hbuf(idx)
        allow = max(0, min(WIN-1, issued[0]-1-idx))
        ex = 1 if (extra[0] is not None and extra[0] >= issued[0]-1-allow) else 0
        a(f"s_waitcnt vmcnt({4*allow + ex})")
        if kind == "K":
            u = hh
            for j in range(4):
                c = "0" if j == 0 else vr(DD+4*u)
                a(f"v_mfma_f32_16x16x32_bf16 {vr(DD+4*u)}, {vr(base+j*4)}, {vr(QOP+4*j)}, {c}")
            issue_after(idx)
            if u == 0:
                continue
            a("s_nop 7")
            a("s_nop 1")
            for i in range(4):
                a(f"v_permlane32_swap_b32 v{DD+i}, v{DD+4+i}")
            a("s_nop 0")
            for i in range(4):
                a(f"v_add_f32_dpp v{SC+4*t+i}, v{DD+4+i}, v{DD+i} quad_perm:[1,0,3,2] row_mask:0xf bank_mask:0xf")
            a(f"v_cvt_pk_bf16_f32 v8, v{SC+4*t}, v{SC+4*t+1}")
            a(f"v_cvt_pk_bf16_f32 v9, v{SC+4*t+2}, v{SC+4*t+3}")
            a(f"v_lshlrev_b32 v{SC+4*t}, 16, v8")
            a(f"v_and_b32 v{SC+4*t+1}, 0xffff0000, v8")
            a(f"v_lshlrev_b32 v{SC+4*t+2}, 16, v9")
            a(f"v_and_b32 v{SC+4*t+3}, 0xffff0000, v9")
            if t == n - 1:
                ns = 4 * n
                a(f"v_max_f32 v12, v{SC}, v{SC+1}")
                for k in range(2, ns, 2):
                    a(f"v_max3_f32 v12, v12, v{SC+k}, v{SC+k+1}")
                cross_g("v_max_f32", 12, 8)
                a("v_mul_f32 v9, s15, v12")
                for k in range(ns):
                    a(f"v_fma_f32 v{SC+k}, v{SC+k}, s15, -v9")
                for k in range(ns):
                    a(f"v_exp_f32 v{SC+k}, v{SC+k}")
                a("s_nop 0")
                a(f"v_add_f32 v13, v{SC}, v{SC+1}")
                for k in range(2, ns):
                    a(f"v_add_f32 v13, v13, v{SC+k}")
                for k in range(0, ns, 2):
                    a(f"v_cvt_pk_bf16_f32 v{PP+k//2}, v{SC+k}, v{SC+k+1}")
                cross_g("v_add_f32", 13, 8)
                stamp(11)
        else:
            hf = hh
            def mf(pw, pT):
                for e in range(2):
                    ac = ACC + 4 * (hf*8 + 2*pw + e)
                    c = "0" if t == 0 else vr(ac)
                    a(f"v_mfma_f32_16x16x16_bf16 {vr(ac)}, {vr(PP+2*t,2)}, {vr(pT+2*e,2)}, {c}")
            for w in range(4):
                R = [base + i*4 + w for i in range(4)]
                T = PT + 4 * w
                a(f"v_perm_b32 v{T}, v{R[1]}, v{R[0]}, s100")
                a(f"v_perm_b32 v{T+1}, v{R[3]}, v{R[2]}, s100")
                a(f"v_perm_b32 v{T+2}, v{R[1]}, v{R[0]}, s101")
                a(f"v_perm_b32 v{T+3}, v{R[3]}, v{R[2]}, s101")
                if w >= 1:
                    mf(w - 1, PT + 4 * (w - 1))
            a("s_nop 1")
            mf(3, PT + 12)
            issue_after(idx)
    a("s_branch L_A_dyn" if POOL else "s_branch L_A_tail")

def a_unit_tail():
    a("L_A_tail:")
    stamp(12)
    a("s_nop 7")
    a("s_nop 7")
    for k in range(16):
        a(f"v_mov_b32 v{32+k}, v{ACC+4*k}")
    a("s_lshl_b32 s10, s3, 10")
    a("v_lshlrev_b32 v8, 5, v2")
    a("v_add_u32 v8, s10, v8")
    a("s_lshl_b32 s11, s3, 3")
    a("v_mov_b32 v9, s11")
    a("s_mov_b64 exec, 0xffff")
    a(f"ds_write_b128 v8, {vr(32)} offset:{LA_OPART}")
    a(f"ds_write_b128 v8, {vr(36)} offset:{LA_OPART+16}")
    a(f"ds_write_b128 v8, {vr(40)} offset:{LA_OPART+512}")
    a(f"ds_write_b128 v8, {vr(44)} offset:{LA_OPART+528}")
    a("s_mov_b64 exec, 1")
    a(f"ds_write_b64 v9, v[12:13] offset:{LA_STAT}")
    a("s_mov_b64 exec, -1")
    a("s_waitcnt lgkmcnt(0)")
    if FWLATE:
        import gen_b
        a("s_cmp_lt_u32 s6, 4")
        a("s_cbranch_scc1 L_A_nfw")
        a("s_cmp_lt_u32 s3, 4")
        a("s_cbranch_scc1 L_A_nfw")
        gen_b.fw_dma(sys.modules[__name__], 0)
        a("L_A_nfw:")
    a("s_barrier")
    a("s_cmp_ge_u32 s3, 4")
    a("s_cbranch_scc1 L_A_exit")
    a("v_mov_b32 v8, 0")
    for k in range(4):
        a(f"ds_read_b128 {vr(32+4*k)}, v8 offset:{LA_STAT+16*k}")
    a(f"ds_read_b32 v15, v8 offset:{LA_Q+512}")
    a("v_lshlrev_b32 v9, 2, v0")
    for w in range(8):
        a(f"ds_read_b32 v{48+w}, v9 offset:{LA_OPART+1024*w}")
    a("s_waitcnt lgkmcnt(0)")
    a("v_max_f32 v12, v32, v34")
    a("v_max3_f32 v12, v12, v36, v38")
    a("v_max3_f32 v12, v12, v40, v42")
    a("v_max3_f32 v12, v12, v44, v46")
    for w in range(8):
        a(f"v_sub_f32 v{32+2*w}, v{32+2*w}, v12")
        a(f"v_mul_f32 v{32+2*w}, s15, v{32+2*w}")
        a(f"v_exp_f32 v{32+2*w}, v{32+2*w}")
    a("s_nop 0")
    a("v_mul_f32 v13, v32, v33")
    a("v_mul_f32 v14, v32, v48")
    for w in range(1, 8):
        a(f"v_fmac_f32 v13, v{32+2*w}, v{33+2*w}")
        a(f"v_fmac_f32 v14, v{32+2*w}, v{48+w}")
    a("s_mul_i32 s10, s8, 6")
    a("s_add_u32 s10, s10, s6")
    a("s_lshl_b32 s11, s10, 12")
    a(f"s_add_u32 s11, s11, {A_PART}")
    a("v_lshlrev_b32 v9, 3, v0")
    a("buffer_store_dwordx2 v[14:15], v9, s[56:59], s11 offen sc1")
    a("s_cmp_lg_u32 s3, 0")
    a("s_cbranch_scc1 L_A_exit")
    a("v_mov_b32 v32, v12")
    a("v_mov_b32 v33, v15")
    a("v_mov_b32 v34, v13")
    a("v_mov_b32 v35, v15")
    a("s_mov_b64 exec, 1")
    a("buffer_store_dwordx4 v[32:35], v8, s[56:59], s11 offen offset:2048 sc1")
    a("s_mov_b64 exec, -1")
    stamp(13)
    a("L_A_exit:")
    a("s_cmp_lt_u32 s6, 4")
    a("s_cbranch_scc1 L_end")
    a("s_branch L_F1")

def main_kernel():
    a(f".globl {KN}\n.p2align 8\n.type {KN},@function\n{KN}:")
    a("s_cmp_ge_u32 s2, 256")
    a("s_cbranch_scc1 L_exit")
    a("v_lshrrev_b32 v8, 6, v0")
    a("v_and_b32 v1, 63, v0")
    a("v_readfirstlane_b32 s3, v8")
    a("v_and_b32 v2, 15, v1")
    a("v_lshrrev_b32 v3, 4, v1")
    stamp_init()
    a("s_and_b32 s8, s2, 7")
    a("s_lshr_b32 s9, s2, 3")
    a("s_cmp_lt_u32 s9, 8")
    a("s_cbranch_scc1 L_B1")
    a("s_cmp_lt_u32 s9, 16")
    a("s_cbranch_scc1 L_B2")
    a("s_sub_u32 s9, s9, 16")
    a("s_lshl_b32 s13, s9, 3")
    a("s_add_u32 s13, s13, s8")
    a("s_lshr_b32 s10, s13, 2")
    a("s_and_b32 s4, s10, 15")
    a("s_lshr_b32 s5, s10, 4")
    a("s_and_b32 s6, s13, 3")
    a(f"s_mul_i32 s7, s6, {TA0*8+TAK}")
    a(f"s_mul_i32 s10, s3, {1 if ILV else TA0}")
    a("s_add_u32 s7, s7, s10")
    wave_split(TA0, TAK)
    a_setup()
    s0_task()
    a_unit_head()
    ns = sorted(set([TA0, TB0] + ([TA0+1] if TAK else []) + ([TB0+1] if TBK else [])))
    for n in ns[:-1]:
        a(f"s_cmp_eq_u32 s14, {n}")
        a(f"s_cbranch_scc1 L_A{n}")
    a_unit_body(ns[-1])
    for n in ns[:-1]:
        a(f"L_A{n}:")
        a_unit_body(n)
    if POOL:
        a_unit_dyn()
    a_unit_tail()
    import gen_b
    gen_b.emit(sys.modules[__name__])
    a("L_end:")
    stamp_dump()
    a("L_exit:")
    a("s_endpgm")

def kd(name, vgpr, sgpr=102):
    a(f""".amdhsa_kernel {name}
  .amdhsa_next_free_vgpr {vgpr}
  .amdhsa_next_free_sgpr {sgpr}
  .amdhsa_accum_offset {(vgpr+3)//4*4}
  .amdhsa_group_segment_fixed_size 0
  .amdhsa_kernarg_size 112
  .amdhsa_user_sgpr_count 2
  .amdhsa_user_sgpr_kernarg_segment_ptr 1
  .amdhsa_system_sgpr_workgroup_id_x 1
.end_amdhsa_kernel""")

L2_O = 0
L2_RED = 2048
L2_FLAG = 18432
LDS_K2 = 18688

def final_kernel():
    a(".globl k2_kernel\n.p2align 8\n.type k2_kernel,@function\nk2_kernel:")
    a("s_cmp_ge_u32 s2, 224")
    a("s_cbranch_scc1 L2_exit")
    if STAMPS:
        a("s_memrealtime s[64:65]")
    load_kernargs()
    a("v_lshrrev_b32 v8, 6, v0")
    a("v_and_b32 v1, 63, v0")
    a("v_readfirstlane_b32 s3, v8")
    a("s_and_b32 s4, s2, 15")
    a("s_lshr_b32 s5, s2, 4")
    a("s_cmp_ge_u32 s5, 7")
    a("s_cselect_b32 s6, 1, 0")
    a("s_mul_i32 s7, s6, 7")
    a("s_sub_u32 s7, s5, s7")
    a(f"s_mov_b32 s15, {C1:#x}")
    a("s_waitcnt lgkmcnt(0)")
    a("s_cmp_eq_u32 s6, 1")
    a(f"s_cselect_b32 s44, s{P_BWO}, s{P_WO}")
    a(f"s_cselect_b32 s45, s{P_BWO+1}, s{P_WO+1}")
    a(f"s_mov_b32 s46, {4096*896:#x}")
    a("s_mov_b32 s47, 0x20000")
    srd(56, P_WS, P_WS+1, WS_SIZE)
    srd(60, P_DBG, P_DBG+1, 256)
    srd(48, P_OUT, P_OUT+1, 1792*2)
    a("v_lshrrev_b32 v2, 3, v1")
    a("v_and_b32 v3, 7, v1")
    a("s_movk_i32 s10, 896")
    a("v_mul_lo_u32 v4, v2, s10")
    a("v_lshl_add_u32 v4, v3, 4, v4")
    a("s_lshl_b32 s10, s4, 8")
    a("s_lshl_b32 s11, s3, 6")
    a("s_add_u32 s10, s10, s11")
    a("s_mul_i32 s10, s10, 896")
    a("s_lshl_b32 s11, s7, 7")
    a("s_add_u32 s10, s10, s11")
    for i in range(8):
        a(f"buffer_load_dwordx4 {vr(32+4*i)}, v4, s[44:47], s10 offen nt")
        if i < 7:
            a(f"s_add_u32 s10, s10, {8*896}")
    a("v_lshlrev_b32 v5, 2, v0")
    a("s_cmp_eq_u32 s6, 1")
    a("s_cbranch_scc1 L2_B")
    a("s_mul_i32 s10, s4, 6")
    a("s_lshl_b32 s11, s10, 10")
    a(f"s_add_u32 s11, s11, {A_PART}")
    a("s_lshl_b32 s12, s10, 3")
    a(f"s_add_u32 s12, s12, {A_STAT}")
    a("v_mov_b32 v6, 0")
    for b in range(2):
        for s in range(6):
            a(f"s_add_u32 s13, s11, {b*96*1024 + s*1024}")
            a(f"buffer_load_dword v{64+b*6+s}, v5, s[56:59], s13 offen")
        a(f"s_add_u32 s13, s12, {b*96*8}")
        for k in range(3):
            a(f"buffer_load_dwordx4 {vr(80+b*12+4*k)}, v6, s[56:59], s13 offen offset:{16*k}")
    a("s_waitcnt vmcnt(0)")
    for b in range(2):
        st = 80 + b*12
        a(f"v_max_f32 v8, v{st}, v{st+2}")
        a(f"v_max3_f32 v8, v8, v{st+4}, v{st+6}")
        a(f"v_max3_f32 v8, v8, v{st+8}, v{st+10}")
        for s in range(6):
            a(f"v_sub_f32 v{st+2*s}, v{st+2*s}, v8")
            a(f"v_mul_f32 v{st+2*s}, s15, v{st+2*s}")
            a(f"v_exp_f32 v{st+2*s}, v{st+2*s}")
        a("s_nop 0")
        a(f"v_mul_f32 v9, v{st}, v{st+1}")
        a(f"v_mul_f32 v{10+b}, v{st}, v{64+b*6}")
        for s in range(1, 6):
            a(f"v_fmac_f32 v9, v{st+2*s}, v{st+2*s+1}")
            a(f"v_fmac_f32 v{10+b}, v{st+2*s}, v{64+b*6+s}")
        a("v_rcp_f32 v12, v9")
        a("s_nop 0")
        a("v_fma_f32 v13, -v9, v12, 1.0")
        a("v_fmac_f32 v12, v13, v12")
        a(f"v_mul_f32 v{10+b}, v{10+b}, v12")
    a("s_branch L2_join")
    a("L2_B:")
    a("s_lshl_b32 s11, s4, 13")
    a(f"s_add_u32 s11, s11, {CTX_P}")
    for qt in range(4):
        a(f"s_add_u32 s13, s11, {qt*2048}")
        for b in range(2):
            a(f"buffer_load_dword v{64+b*4+qt}, v5, s[56:59], s13 offen offset:{b*1024}")
    a("s_waitcnt vmcnt(0)")
    for b in range(2):
        a(f"v_add_f32 v{10+b}, v{64+b*4}, v{65+b*4}")
        a(f"v_add_f32 v12, v{66+b*4}, v{67+b*4}")
        a(f"v_add_f32 v{10+b}, v{10+b}, v12")
    a("L2_join:")
    if STAMPS:
        a("s_memrealtime s[66:67]")
    a("v_cvt_pk_bf16_f32 v12, v10, v11")
    a("v_lshlrev_b32 v10, 16, v12")
    a("v_and_b32 v11, 0xffff0000, v12")
    a("v_lshlrev_b32 v8, 3, v0")
    a(f"ds_write_b64 v8, v[10:11] offset:{L2_O}")
    a("s_waitcnt lgkmcnt(0)")
    a("s_barrier")
    a("s_lshl_b32 s10, s3, 9")
    a("v_lshlrev_b32 v8, 3, v2")
    a("v_add_u32 v8, s10, v8")
    for i in range(8):
        a(f"ds_read_b64 v[{64+2*i}:{65+2*i}], v8 offset:{L2_O + i*64}")
    for k in range(16):
        a(f"v_mov_b32 v{96+k}, 0")
    a("s_waitcnt lgkmcnt(0)")
    for i in range(8):
        for w in range(4):
            a(f"v_lshlrev_b32 v8, 16, v{32+4*i+w}")
            a(f"v_and_b32 v9, 0xffff0000, v{32+4*i+w}")
            for b in range(2):
                a(f"v_fmac_f32 v{96+8*b+2*w}, v8, v{64+2*i+b}")
                a(f"v_fmac_f32 v{96+8*b+2*w+1}, v9, v{64+2*i+b}")
    a("v_lshlrev_b32 v8, 6, v0")
    for k in range(4):
        a(f"ds_write_b128 v8, {vr(96+4*k)} offset:{L2_RED+16*k}")
    a("s_waitcnt lgkmcnt(0)")
    a("s_barrier")
    a("s_cmp_ge_u32 s3, 2")
    a("s_cbranch_scc1 L2_wait")
    a("v_lshrrev_b32 v8, 3, v1")
    a("v_lshlrev_b32 v8, 6, v8")
    a("v_lshl_add_u32 v8, v3, 2, v8")
    a("s_lshl_b32 s10, s3, 5")
    a("v_add_u32 v8, s10, v8")
    for j in range(32):
        a(f"ds_read_b32 v{32+j}, v8 offset:{L2_RED + j*512}")
    a("s_waitcnt lgkmcnt(0)")
    for st in (16, 8, 4, 2, 1):
        for i in range(st):
            a(f"v_add_f32 v{32+i}, v{32+i}, v{32+i+st}")
    a("s_lshl_b32 s10, s5, 4")
    a("s_add_u32 s10, s10, s4")
    a("s_lshl_b32 s10, s10, 9")
    a(f"s_add_u32 s10, s10, {OUT_P}")
    a("buffer_store_dword v32, v5, s[56:59], s10 offen sc1")
    a("s_waitcnt vmcnt(0)")
    a("L2_wait:")
    if STAMPS:
        a("s_memrealtime s[68:69]")
    a("s_barrier")
    a("s_cmp_lg_u32 s3, 0")
    a("s_cbranch_scc1 L2_wait2")
    a("v_mov_b32 v8, 1")
    a("s_lshl_b32 s10, s5, 2")
    a("v_mov_b32 v9, s10")
    a("s_mov_b64 exec, 1")
    a("buffer_atomic_add v8, v9, s[60:63], 0 offen sc0")
    a("s_waitcnt vmcnt(0)")
    a("v_mov_b32 v9, 0")
    a(f"ds_write_b32 v9, v8 offset:{L2_FLAG}")
    a("s_waitcnt lgkmcnt(0)")
    a("s_mov_b64 exec, -1")
    a("L2_wait2:")
    a("s_barrier")
    a("s_cmp_ge_u32 s3, 2")
    a("s_cbranch_scc1 L2_end")
    a("v_mov_b32 v9, 0")
    a(f"ds_read_b32 v8, v9 offset:{L2_FLAG}")
    a("s_waitcnt lgkmcnt(0)")
    a("v_readfirstlane_b32 s10, v8")
    a("s_cmp_lg_u32 s10, 15")
    a("s_cbranch_scc1 L2_end")
    a("s_lshl_b32 s10, s5, 13")
    a(f"s_add_u32 s10, s10, {OUT_P}")
    for h in range(16):
        if h == 8:
            a("s_add_u32 s10, s10, 0x1000")
        a(f"buffer_load_dword v{32+h}, v5, s[56:59], s10 offen offset:{(h%8)*512} sc1")
    a("s_waitcnt vmcnt(0)")
    for st in (8, 4, 2, 1):
        for i in range(st):
            a(f"v_add_f32 v{32+i}, v{32+i}, v{32+i+st}")
    a("v_cvt_pk_bf16_f32 v32, v32, v32")
    a("s_mul_i32 s10, s3, 896")
    a("s_mul_i32 s11, s6, 448")
    a("s_add_u32 s10, s10, s11")
    a("s_lshl_b32 s11, s7, 6")
    a("s_add_u32 s10, s10, s11")
    a("s_lshl_b32 s10, s10, 1")
    a("v_lshlrev_b32 v8, 1, v1")
    a("buffer_store_short v32, v8, s[48:51], s10 offen")
    a("L2_end:")
    if STAMPS:
        a("s_mov_b64 exec, -1")
        a("s_cmp_lg_u32 s3, 0")
        a("s_cbranch_scc1 L2_exit")
        a("s_waitcnt vmcnt(0)")
        a("s_memrealtime s[70:71]")
        a("s_waitcnt lgkmcnt(0)")
        for k in range(8):
            a(f"v_mov_b32 v{32+k}, s{64+k}")
        a("v_mov_b32 v8, 0")
        a("s_lshl_b32 s10, s2, 5")
        a(f"s_add_u32 s10, s10, {STAMP + 0x10000}")
        a("s_mov_b64 exec, 1")
        a("buffer_store_dwordx4 v[32:35], v8, s[56:59], s10 offen")
        a("buffer_store_dwordx4 v[36:39], v8, s[56:59], s10 offen offset:16")
    a("L2_exit:")
    a("s_endpgm")

def main():
    hdr = open("concat_heads__mha_block_cached__compressed_kv_cla__decode.s.ref").read().split("; Override launch geometry")[0]
    a(hdr.rstrip())
    a(f"; @launch grid=(256,1,1) block=(512,1,1) lds={LDS_K1}")
    a('.amdgcn_target "amdgcn-amd-amdhsa--gfx950"')
    a(".text")
    main_kernel()
    a('.section .rodata,"a"')
    a(".p2align 6")
    kd(KN, 256)
    print("\n".join(OUT))

if __name__ == "__main__":
    sys.path.insert(0, "scratch")
    sys.modules["gen"] = sys.modules[__name__]
    main()
```
